```python
import torch

def _softmax(x, axis=-1):
    return torch.softmax(x, dim=axis)
def _gelu(x):
    return torch.nn.functional.gelu(x, approximate="tanh")
def _silu(x):
    return torch.nn.functional.silu(x)
def _sigmoid(x):
    return torch.sigmoid(x)
def _layernorm(x, axis=-1, eps=1e-5):
    m = x.mean(dim=axis, keepdim=True)
    v = x.var(dim=axis, keepdim=True, unbiased=False)
    return (x - m) / torch.sqrt(v + eps)
def _scatter_add(tgt, idx, src, axis=0):
    return tgt.clone().index_add_(axis, idx, src)
def _segment_sum(src, seg, n):
    out = torch.zeros((n,) + src.shape[1:], dtype=src.dtype)
    return out.index_add_(0, seg, src)
def _pad(x, pw):
    flat = tuple(v for pair in reversed(pw) for v in pair)
    return torch.nn.functional.pad(x, flat)

kernel_name = 'gated_mix__grouped_kv_mqa__mixer_token_mlp__prompt'

def setup_inputs():

    _w = (lambda a: (lambda t: t.to(torch.bfloat16) if t.is_floating_point() else t)(torch.as_tensor(a)))
    def _A_setup():
        B, S, D, H = 1, 2048, 448, 16
        Dh = D // H
        return {
            "x": _w((lambda *s: torch.randn(*s, dtype=torch.bfloat16) * 0.05)(B, S, D)),
            "wq": _w((lambda *s: torch.randn(*s, dtype=torch.bfloat16) * 1.6)(D, H * Dh)),
            "wk": _w((lambda *s: torch.randn(*s, dtype=torch.bfloat16) * 1.6)(D, Dh)),
            "wv": _w((lambda *s: torch.randn(*s, dtype=torch.bfloat16) * 0.05)(D, Dh)),
            "wo": _w((lambda *s: torch.randn(*s, dtype=torch.bfloat16) * 0.05)(H * Dh, D)),
        }
    _A_in = _A_setup()

    def _B_setup():
        B, S, D, F = 1, 2048, 448, 1792
        return {
            "x": _w((lambda *s: torch.randn(*s, dtype=torch.bfloat16) * 0.05)(B, S, D)),
            "w1": _w((lambda *s: torch.randn(*s, dtype=torch.bfloat16) * 0.8)(S, F) * (S ** -0.5)),
            "b1": _w((lambda *s: torch.randn(*s, dtype=torch.bfloat16) * 12.8)(F) * 0.02),
            "w2": _w((lambda *s: torch.randn(*s, dtype=torch.bfloat16) * 0.05)(F, S) * (F ** -0.5)),
            "b2": _w((lambda *s: torch.randn(*s, dtype=torch.bfloat16) * 0.4)(S) * 0.02),
        }
    _B_in = _B_setup()

    return {
        "A_x": _A_in["x"],
        "A_wq": _A_in["wq"],
        "A_wk": _A_in["wk"],
        "A_wv": _A_in["wv"],
        "A_wo": _A_in["wo"],
        "B_x": _B_in["x"],
        "B_w1": _B_in["w1"],
        "B_b1": _B_in["b1"],
        "B_w2": _B_in["w2"],
        "B_b2": _B_in["b2"],
        "gate_w": _w((lambda *s: torch.randn(*s, dtype=torch.bfloat16) * 0.05)(448) * 16.0),
    }

def reference(A_x, A_wq, A_wk, A_wv, A_wo, B_x, B_w1, B_b1, B_w2, B_b2, gate_w):
    def _A_ref(x, wq, wk, wv, wo):
        B, S, D = x.shape
        H = 16
        Dh = D // H
        q = (lambda x, *d: x.permute(*d))((x @ wq).reshape(B, S, H, Dh), 0, 2, 1, 3)
        k = x @ wk
        v = x @ wv
        scores = torch.einsum("bhqd,bkd->bhqk", q, k) * (Dh ** -0.5)
        p = _softmax(scores, axis=-1)
        o = torch.einsum("bhqk,bkd->bhqd", p, v)
        return (lambda x, *d: x.permute(*d))(o, 0, 2, 1, 3).reshape(B, S, H * Dh) @ wo

    def _B_ref(x, w1, b1, w2, b2):
        B, S, D = x.shape
        h = _layernorm(x, axis=-1)
        u = torch.einsum("bsd,sf->bdf", h, w1) + b1
        u = _gelu(u)
        y = torch.einsum("bdf,fs->bds", u, w2) + b2
        return (lambda x, *d: x.permute(*d))(y, 0, 2, 1)

    x = A_x
    g = _sigmoid((x * gate_w).sum(-1, keepdims=True))
    a = _A_ref(x, A_wq, A_wk, A_wv, A_wo)
    b = _B_ref(x, B_w1, B_b1, B_w2, B_b2)
    return g * a + (1 - g) * b
```

```python
WS_Q, WS_KV, WS_HT, WS_U, WS_O, WS_G, WS_END = 0, 0x200000, 0x280000, 0x480000, 0x680000, 0x880000, 0x900000
ARG = dict(x=0, wq=8, wk=16, wv=24, wo=32, w1=48, b1=56, w2=64, b2=72, gw=80, out=88, dbg=96, ws=104)
SIZE = dict(x=1835008, wq=401408, wk=25088, wv=25088, wo=401408, w1=7340032, b1=3584, w2=7340032, b2=4096,
            gw=896, out=1835008, dbg=256, ws=WS_END)
def R(a, n, p='v'): return f"{p}[{a}:{a+n-1}]" if n > 1 else f"{p}{a}"
class K:
    def __init__(s, name, nv=256):
        s.name, s.nv, s.L = name, nv, []
    def __call__(s, t):
        for l in t.strip().split("\n"): s.L.append(" " + l.strip())
    def lab(s, n): s.L.append(f"{s.name}_{n}:")
    def br(s, op, n): s(f"{op} {s.name}_{n}")
    def srds(s, m):
        for nm, r in m.items(): s(f"s_load_dwordx2 {R(r,2,'s')}, s[0:1], {ARG[nm]}")
        for nm, r in m.items(): s(f"s_mov_b32 s{r+2}, {SIZE[nm]}\ns_mov_b32 s{r+3}, 0x20000")
    def mfma(s, d, a, b, c=None):
        cc = R(d,16) if c is None else c
        s(f"v_mfma_f32_32x32x16_bf16 {R(d,16)}, {R(a,4)}, {R(b,4)}, {cc}")
    def ld(s, d, n, voff, srd, soff=0, off=0, fl=''):
        op = {1:'dword',2:'dwordx2',4:'dwordx4'}[n]
        s(f"buffer_load_{op} {R(d,n)}, v{voff}, {R(srd,4,'s')}, {soff} offen offset:{off} {fl}")
    def st(s, d, n, voff, srd, soff=0, off=0, fl=''):
        op = {1:'dword',2:'dwordx2',4:'dwordx4'}[n]
        s(f"buffer_store_{op} {R(d,n)}, v{voff}, {R(srd,4,'s')}, {soff} offen offset:{off} {fl}")
    def dma(s, voff, srd, soff=0, off=0, fl=''):
        s(f"buffer_load_dwordx4 v{voff}, {R(srd,4,'s')}, {soff} offen offset:{off} {fl} lds")
    def tr(s, d, va, off): s(f"ds_read_b64_tr_b16 {R(d,2)}, v{va} offset:{off}")
    def cvt(s, d, a, b): s(f"v_cvt_pk_bf16_f32 v{d}, v{a}, v{b}")
    def text(s):
        n = s.name
        return (f".text\n.globl {n}\n.p2align 8\n.type {n},@function\n{n}:\n" + "\n".join(s.L) +
f"""
.section .rodata,"a"
.p2align 6
.amdhsa_kernel {n}
  .amdhsa_next_free_vgpr {s.nv}
  .amdhsa_next_free_sgpr 102
  .amdhsa_accum_offset {min(s.nv,256)}
  .amdhsa_group_segment_fixed_size 0
  .amdhsa_kernarg_size 112
  .amdhsa_user_sgpr_count 2
  .amdhsa_user_sgpr_kernarg_segment_ptr 1
  .amdhsa_system_sgpr_workgroup_id_x 1
.end_amdhsa_kernel
""")
def lane_fields(k, trrow):
    k("""v_and_b32 v1, 63, v0
    v_lshrrev_b32 v2, 5, v1
    v_and_b32 v3, 31, v1
    v_bfe_u32 v4, v1, 2, 2
    v_and_b32 v5, 16, v1
    v_and_b32 v6, 3, v1
    v_lshlrev_b32 v5, 1, v5
    v_lshl_add_u32 v5, v6, 3, v5""")
```

```python
from gen_common import *
def gemm(k, steps, D, FR, TR, extra=0):
    n = len(steps)
    def load(s):
        p = steps[s]; sl = s % D
        v0, v1, srd, so, inc = p['dma']
        k(f"s_add_u32 m0, s40, {2048*sl}")
        f0, f1, fsrd, fso = p['frag']
        k.ld(FR+8*sl, 4, f0, fsrd, fso)
        k.dma(v0, srd, so, 0, p.get('fl', '')); k.dma(v1, srd, so, 1024, p.get('fl', ''))
        k.ld(FR+8*sl+4, 4, f1, fsrd, fso)
        k(f"s_add_u32 {so}, {so}, {inc}\ns_add_u32 {fso}, {fso}, 2048")
    def trs(s):
        p = steps[s]; b = TR + 8*(s & 1); o = 2048*(s % D)
        for h in range(2): k.tr(b+4*h, p['trv'][h], o); k.tr(b+4*h+2, p['trv'][h], o + p['roff'])
    for s in range(D): load(s)
    k(f"s_waitcnt vmcnt({4*(D-1)})"); trs(0)
    for s in range(n):
        p = steps[s]
        if s + 1 < n:
            k(f"s_waitcnt vmcnt({4*(min(s+D, n)-s-2)})"); trs(s+1); k("s_waitcnt lgkmcnt(4)")
        else: k("s_waitcnt lgkmcnt(0)")
        t = TR + 8*(s & 1); f = FR + 8*(s % D)
        for a in range(2):
            for b in range(2):
                A, B = (t+4*a, f+4*b) if p['w_is_a'] else (f+4*a, t+4*b)
                k.mfma(p['acc']+16*(2*a+b), A, B, '0' if p['first'] else None)
        if s + D < n: load(s+D)
def dma_offs(k, v0, v1, stride):
    k(f"""v_lshrrev_b32 v7, 3, v1
    v_and_b32 v8, 7, v1
    v_lshrrev_b32 v9, 2, v1
    v_and_b32 v9, 4, v9
    v_xor_b32 v8, v8, v9
    v_mul_u32_u24 v7, {stride}, v7
    v_lshl_add_u32 v{v0}, v8, 4, v7
    v_add_u32 v{v1}, {8*stride-1024}, v{v0}""")
def tr_offs(k, v0, v1, hfmul, sx):
    k(f"""v_mad_u32_u24 v7, v2, {hfmul}, v4
    v_lshl_add_u32 v7, v7, 7, v5
    v_add_u32 v7, s40, v7
    v_lshrrev_b32 v8, 1, v4
    v_xor_b32 v8, {sx}, v8
    v_lshl_add_u32 v{v0}, v8, 6, v7
    v_xor_b32 v{v1}, 64, v{v0}""")
def frag_offs(k, v0, v1, sx):
    k(f"v_lshlrev_b32 v7, 4, v1\nv_lshl_add_u32 v{v0}, {sx}, 10, v7\nv_xor_b32 v{v1}, 1024, v{v0}")
def red_write(k, acc, sw, base, wstride):
    k(f"s_mul_i32 s41, {sw}, {wstride}\ns_add_u32 s41, s41, {base}\nv_lshl_add_u32 v7, v1, 4, s41")
    for u in range(1, 4):
        for i in range(4): k(f"ds_write_b128 v7, {R(acc+16*u+4*i,4)} offset:{((u-1)*4+i)*1024}")
def red_read(k, acc, sw, base, wstride):
    for u in range(1, 4):
        k(f"s_xor_b32 s41, {sw}, {u}\ns_mul_i32 s41, s41, {wstride}\ns_add_u32 s41, s41, {base}\nv_lshl_add_u32 v7, v1, 4, s41")
        for i in range(4): k(f"ds_read_b128 {R(acc+16*u+4*i,4)}, v7 offset:{((u-1)*4+i)*1024}")
    for u in range(1, 4):
        k(f"s_waitcnt lgkmcnt({4*(3-u)})")
        for i in range(16): k(f"v_add_f32 v{acc+i}, v{acc+i}, v{acc+16*u+i}")
```

```python
from gen_common import *
LX, LWQ, LWKV, LHL, K1_LDS = 0, 57344, 107776, 140544, 147712
def proj(k, wstride, swap, acc=64):
    def rd(s):
        b = 16 + (s % 4) * 8
        k(f"ds_read_b128 {R(b,4)}, v{10+s%4} offset:{128*(s//4)}")
        k.tr(b+4, 14, 16*wstride*s); k.tr(b+6, 14, 16*wstride*s + 4*wstride)
    for s in range(3): rd(s)
    for s in range(28):
        if s + 3 < 28: rd(s+3)
        k(f"s_waitcnt lgkmcnt({3*min(3, 27-s)})")
        b = 16 + (s % 4) * 8
        a_, b_ = (b, b+4) if swap else (b+4, b)
        k.mfma(acc, a_, b_, '0' if s == 0 else None)
    k("s_nop 7\ns_nop 7")
def xbases(k, sth):
    k(f"""v_lshl_add_u32 v7, {sth}, 5, v3
    v_bfe_u32 v8, v7, 1, 3
    v_mul_u32_u24 v7, 896, v7""")
    for b in range(4):
        k(f"v_or_b32 v9, {2*b}, v2\nv_xor_b32 v9, v9, v8\nv_lshl_add_u32 v{10+b}, v9, 4, v7")
def gen_k1():
    k = K("k1_kernel", 128)
    X, WQ, WK, WS, GW = 8, 12, 16, 20, 24
    k("s_cmp_ge_u32 s2, 256"); k.br("s_cbranch_scc1", "end")
    k.srds(dict(x=X, wq=WQ, wk=WK, ws=WS, gw=GW))
    k(f"""s_load_dwordx2 s[28:29], s[0:1], {ARG['wv']}
    v_lshrrev_b32 v1, 6, v0
    s_and_b32 s3, s2, 31
    v_readfirstlane_b32 s5, v1
    s_lshr_b32 s4, s2, 5""")
    lane_fields(k, 0)
    k("""s_mul_i32 s6, s3, 57344
    s_mul_i32 s7, s5, 7168
    s_add_u32 s6, s6, s7
    s_lshl_b32 s30, s5, 2
    s_mov_b32 m0, s7
    s_waitcnt lgkmcnt(0)
    s_cmp_ge_u32 s5, 4""")
    k.br("s_cbranch_scc0", "noln0")
    k(f"""s_lshl_b32 s31, s3, 6
    s_lshl_b32 s32, s4, 3
    s_add_u32 s31, s31, s32
    s_lshl_b32 s32, s5, 1
    s_add_u32 s31, s31, s32
    s_sub_u32 s31, s31, 8
    v_add_u32 v50, s31, v2
    v_lshlrev_b32 v7, 4, v3
    v_mov_b32 v9, 0x7ff00000
    v_cmp_gt_u32 vcc, 28, v3
    v_mul_u32_u24 v8, 896, v50
    v_cndmask_b32 v7, v9, v7, vcc
    v_add_u32 v8, v8, v7""")
    k.ld(52, 4, 8, X); k.ld(56, 4, 8, X, 0, 448); k.ld(60, 4, 7, GW); k.ld(96, 4, 7, GW, 0, 448)
    k.lab("noln0")
    for i in range(7):
        k(f"""v_add_u32 v7, {64*i}, v1
        v_mul_u32_u24 v8, 1171, v7
        v_lshrrev_b32 v8, 17, v8
        v_add_u32 v8, s30, v8
        v_and_b32 v8, 7, v8
        v_xor_b32 v7, v7, v8
        v_lshlrev_b32 v7, 4, v7""")
        k.dma(7, X, 's6')
        k("s_add_u32 m0, m0, 1024")
    k("s_cmp_eq_u32 s5, 7"); k.br("s_cbranch_scc1", "nowq")
    k(f"""s_add_u32 m0, s7, {LWQ}
    s_mul_i32 s6, s5, 57344
    s_mul_i32 s31, s4, 112
    s_add_u32 s6, s6, s31""")
    for i in range(7):
        k(f"""v_add_u32 v7, {64*i}, v1
        v_mul_u32_u24 v8, 9363, v7
        v_lshrrev_b32 v8, 16, v8
        v_mul_u32_u24 v8, 784, v8
        v_lshl_add_u32 v7, v7, 4, v8""")
        k.dma(7, WQ, 's6')
        k("s_add_u32 m0, m0, 1024")
    k.lab("nowq")
    k("s_cmp_ge_u32 s4, 4"); k.br("s_cbranch_scc1", "nokv")
    k(f"""s_cmp_ge_u32 s4, 2
    s_cselect_b32 s{WK}, s28, s{WK}
    s_cselect_b32 s{WK+1}, s29, s{WK+1}
    s_lshl_b32 s6, s5, 10
    s_add_u32 m0, s6, {LWKV}
    v_lshlrev_b32 v7, 4, v0""")
    for i in range(4):
        k.dma(7, WK)
        k("s_add_u32 m0, m0, 8192\nv_add_u32 v7, 8192, v7")
    k.lab("nokv")
    k("s_cmp_ge_u32 s5, 4"); k.br("s_cbranch_scc0", "bar")
    k("s_waitcnt vmcnt(7)")
    XR, GR = 64, 80
    for i in range(8):
        g = 60 + i if i < 4 else 92 + i
        k(f"""v_lshlrev_b32 v{XR+2*i}, 16, v{52+i}
        v_and_b32 v{XR+2*i+1}, 0xffff0000, v{52+i}
        v_lshlrev_b32 v{GR+2*i}, 16, v{g}
        v_and_b32 v{GR+2*i+1}, 0xffff0000, v{g}""")
    k(f"v_add_f32 v16, v{XR}, v{XR+1}\nv_mul_f32 v17, v{XR}, v{GR}\nv_fmac_f32 v17, v{XR+1}, v{GR+1}")
    for i in range(2, 16): k(f"v_add_f32 v16, v16, v{XR+i}\nv_fmac_f32 v17, v{XR+i}, v{GR+i}")
    def red(regs):
        for m in ("quad_perm:[1,0,3,2]", "quad_perm:[2,3,0,1]", "row_half_mirror", "row_mirror"):
            k("s_nop 1")
            for r in regs: k(f"v_add_f32_dpp v{r}, v{r}, v{r} {m} row_mask:0xf bank_mask:0xf")
        for r in regs: k(f"ds_swizzle_b32 v{r+4}, v{r} offset:0x401F")
        k("s_waitcnt lgkmcnt(0)")
        for r in regs: k(f"v_add_f32 v{r}, v{r}, v{r+4}")
    red([16, 17])
    k(f"v_mul_f32 v16, {1/448!r}, v16\nv_mul_f32 v17, -1.4426950408889634, v17\nv_mov_b32 v18, 0")
    for i in range(16): k(f"v_sub_f32 v{XR+i}, v{XR+i}, v16\nv_fmac_f32 v18, v{XR+i}, v{XR+i}")
    k("v_exp_f32 v17, v17\nv_cndmask_b32 v18, 0, v18, vcc\nv_add_f32 v17, 1.0, v17\nv_rcp_f32 v17, v17")
    red([18])
    k(f"""v_mov_b32 v16, 1e-5
    v_fmac_f32 v16, {1/448!r}, v18
    v_rsq_f32 v16, v16
    v_lshlrev_b32 v7, 2, v50
    v_add_u32 v7, {WS_G}, v7""")
    for i in range(16): k(f"v_mul_f32 v{XR+i}, v{XR+i}, v16")
    for i in range(8): k.cvt(52+i, XR+2*i, XR+2*i+1)
    k(f"""v_and_b32 v8, 7, v50
    v_mul_u32_u24 v8, 896, v8
    v_lshl_add_u32 v8, v3, 4, v8
    v_add_u32 v8, {LHL}, v8
    s_and_saveexec_b64 s[34:35], vcc
    ds_write_b128 v8, v[52:55]
    ds_write_b128 v8, v[56:59] offset:448
    v_cmp_eq_u32 vcc, 0, v3
    s_and_b64 exec, exec, vcc""")
    k.st(17, 1, 7, WS)
    k("s_mov_b64 exec, s[34:35]")
    k.lab("bar")
    k("s_waitcnt vmcnt(0) lgkmcnt(0)\ns_barrier\ns_cmp_ge_u32 s5, 4"); k.br("s_cbranch_scc1", "hi")
    k("s_and_b32 s6, s5, 1\ns_lshr_b32 s7, s5, 1\ns_mul_i32 s7, s7, 56")
    xbases(k, 's6')
    k(f"""v_lshl_add_u32 v14, v2, 3, v4
    v_mul_u32_u24 v14, 112, v14
    v_add3_u32 v14, v14, v5, s7
    v_add_u32 v14, {LWQ}, v14""")
    proj(k, 112, False)
    for i in range(16): k(f"v_mul_f32 v{64+i}, {28**-0.5*1.4426950408889634!r}, v{64+i}")
    k("v_cmp_gt_u32 vcc, 32, v1")
    for i in range(8): k.cvt(16+i, 64+2*i, 65+2*i)
    k(f"""v_cndmask_b32 v22, 0, v22, vcc
    v_cndmask_b32 v23, 0, v23, vcc
    s_lshl_b32 s6, s3, 3
    s_add_u32 s6, s6, s4
    s_lshl_b32 s6, s6, 2
    s_add_u32 s6, s6, s5
    s_lshl_b32 s6, s6, 11""")
    k.lab("st2")
    k("v_lshlrev_b32 v7, 4, v1")
    k.st(16, 4, 7, WS, 's6'); k.st(20, 4, 7, WS, 's6', 1024)
    k("s_endpgm")
    k.lab("hi")
    k("s_cmp_eq_u32 s5, 5"); k.br("s_cbranch_scc1", "ht")
    k("s_cmp_eq_u32 s5, 4"); k.br("s_cbranch_scc0", "end")
    k("s_cmp_ge_u32 s4, 4"); k.br("s_cbranch_scc1", "end")
    k("s_and_b32 s7, s4, 1")
    xbases(k, 's7')
    k(f"""v_lshl_add_u32 v14, v2, 3, v4
    v_mul_u32_u24 v14, 56, v14
    v_add_u32 v14, v14, v5
    v_add_u32 v14, {LWKV}, v14
    s_lshl_b32 s6, s3, 1
    s_add_u32 s6, s6, s7
    s_lshl_b32 s6, s6, 12
    s_add_u32 s6, s6, {WS_KV}
    s_cmp_ge_u32 s4, 2"""); k.br("s_cbranch_scc1", "vv")
    proj(k, 56, False)
    k("v_cmp_gt_u32 vcc, 32, v1\nv_mov_b32 v8, 0x3f803f80\nv_mov_b32 v9, 0x3f80")
    for i in range(8): k.cvt(16+i, 64+2*i, 65+2*i)
    k("v_cndmask_b32 v22, v8, v22, vcc\nv_cndmask_b32 v23, v9, v23, vcc")
    k.br("s_branch", "st2")
    k.lab("vv")
    proj(k, 56, True)
    k("""v_cmp_eq_u32 vcc, 28, v3
    v_mov_b32 v8, 0x3f803f80
    s_add_u32 s6, s6, 2048
    v_cndmask_b32 v8, 0, v8, vcc
    v_cmp_gt_u32 vcc, 28, v3""")
    for i in range(8): k.cvt(16+i, 64+2*i, 65+2*i)
    for i in range(8): k(f"v_cndmask_b32 v{16+i}, v8, v{16+i}, vcc")
    k.br("s_branch", "st2")
    k.lab("ht")
    k(f"""v_mul_u32_u24 v7, 896, v4
    v_lshl_add_u32 v7, v2, 6, v7
    v_add_u32 v7, v7, v5
    v_add_u32 v7, {LHL}, v7""")
    for i in range(7): k.tr(16+4*i, 7, 128*i); k.tr(18+4*i, 7, 128*i + 3584)
    k(f"""s_lshl_b32 s6, s3, 2
    s_lshr_b32 s7, s4, 1
    s_add_u32 s6, s6, s7
    s_lshl_b32 s6, s6, 11
    s_and_b32 s7, s4, 1
    s_lshl_b32 s7, s7, 9
    s_add_u32 s6, s6, s7
    s_add_u32 s6, s6, {WS_HT}
    v_lshlrev_b32 v8, 4, v3
    v_lshl_add_u32 v8, v2, 10, v8""")
    for i in range(7):
        k(f"s_waitcnt lgkmcnt({12-2*i})")
        k.st(16+4*i, 4, 8, WS, 's6')
        k("s_add_u32 s6, s6, 262144")
    k.lab("end")
    k("s_endpgm")
    return k
```

```python
from gen_common import *
from gen_gemm import *
D2 = 12
LRED = 4*2048*D2
LFLAG = LRED + 49152
K2_LDS = LFLAG + 64
Q, O, S, P, KV, MX = 16, 48, 112, 144, 160, 224
def attn(k, WS):
    k(f"""s_lshl_b32 s6, s3, 3
    s_add_u32 s6, s6, s4
    s_lshl_b32 s6, s6, 13
    v_lshlrev_b32 v10, 4, v1
    s_lshl_b32 s31, s5, 16
    s_add_u32 s31, s31, {WS_KV}
    s_lshl_b32 s7, s3, 1
    s_and_b32 s34, s5, 1
    s_add_u32 s7, s7, s34
    v_lshl_add_u32 v7, s7, 5, v3
    v_lshlrev_b32 v7, 2, v7
    s_mov_b32 s34, {WS_G}
    s_mov_b32 s36, 1
    s_waitcnt lgkmcnt(0)""")
    for u in range(4):
        k(f"s_xor_b32 s7, s5, {u}\ns_lshl_b32 s7, s7, 11\ns_add_u32 s7, s7, s6")
        k.ld(Q+8*u, 4, 10, WS, 's7'); k.ld(Q+8*u+4, 4, 10, WS, 's7', 1024)
    k.ld(11, 1, 7, WS, 's34')
    k.lab("pass")
    k(f"s_mov_b32 s30, {WS_KV}\ns_mov_b32 s35, s36")
    for u in range(4): k(f"v_mov_b32 v{MX+u}, 0xff800000")
    k.lab("mx")
    k.ld(MX+8, 4, 10, WS, 's30'); k.ld(MX+12, 4, 10, WS, 's30', 1024)
    k("s_add_u32 s30, s30, 4096\ns_sub_u32 s35, s35, 1\ns_cmp_lg_u32 s35, 0"); k.br("s_cbranch_scc1", "nopre")
    k("s_mov_b32 s30, s31")
    for t in range(3):
        for i in range(4): k.ld(KV+16*t+4*i, 4, 10, WS, 's30', 1024*i)
        k("s_add_u32 s30, s30, 4096")
    k("s_waitcnt vmcnt(12)"); k.br("s_branch", "mx2")
    k.lab("nopre"); k("s_waitcnt vmcnt(0)")
    k.lab("mx2")
    for u in range(4):
        k.mfma(O+16*u, MX+8, Q+8*u, '0'); k.mfma(O+16*u, MX+12, Q+8*u+4)
    for u in range(4):
        for i in range(8): k(f"v_max3_f32 v{MX+u}, v{O+16*u+2*i}, v{O+16*u+2*i+1}, v{MX+u}")
    k("s_cmp_lg_u32 s35, 0"); k.br("s_cbranch_scc1", "mx")
    k("v_cmp_gt_u32 vcc, 32, v1")
    for u in range(4): k(f"v_mov_b32 v{MX+4+u}, v{MX+u}")
    for u in range(4): k(f"v_permlane32_swap_b32 v{MX+u}, v{MX+4+u}")
    for u in range(4):
        m, t = MX+u, MX+4+u
        k(f"""v_max_f32 v{m}, v{m}, v{t}
        v_xor_b32 v{m}, 0x80000000, v{m}
        v_and_b32 v{t}, 0xffff0000, v{m}
        v_sub_f32 v{m}, v{m}, v{t}
        v_lshrrev_b32 v{t}, 16, v{t}
        v_and_b32 v8, 0xffff0000, v{m}
        v_sub_f32 v{m}, v{m}, v8
        v_or_b32 v{t}, v{t}, v8
        v_lshrrev_b32 v{m}, 16, v{m}
        v_cndmask_b32 v{Q+8*u+6}, v{t}, v{Q+8*u+6}, vcc
        v_cndmask_b32 v{Q+8*u+7}, v{m}, v{Q+8*u+7}, vcc""")
    for i in range(64): k(f"v_mov_b32 v{O+i}, 0")
    for i in range(4): k(f"v_mov_b32 v{P+12+i}, 0\nv_mov_b32 v{KV+60+i}, 0")
    k("s_waitcnt vmcnt(8)\ns_mov_b32 s35, 4")
    k.mfma(S, KV, Q, '0'); k.mfma(S, KV+4, Q+4)
    k("s_nop 11")
    k.lab("loop")
    for n in range(16):
        t, u = n >> 2, n & 3
        s, p = S + 16*(n & 1), P + 8*(n & 1)
        n1 = (n+1) & 15; s1, k1, q1 = S + 16*(n1 & 1), KV + 16*(n1 >> 2), Q + 8*(n1 & 3)
        n0 = (n-1) & 15
        ex = lambda a, b: [k(f"v_exp_f32 v{s+i}, v{s+i}") for i in range(a, b)]
        cv = lambda a, b: [k.cvt(p+i, s+2*i, s+2*i+1) for i in range(a, b)]
        if u == 3: k("s_waitcnt vmcnt(8)")
        k.mfma(s1, k1, q1, '0')
        ex(0, 5); cv(0, 2)
        k.mfma(O+16*(n0 & 3), KV+16*(n0 >> 2)+12, P+8*(n0 & 1)+4)
        if u == 0:
            for i in range(4): k.ld(KV+16*((t+3) & 3)+4*i, 4, 10, WS, 's30', 1024*i)
            k("s_add_u32 s30, s30, 4096")
        ex(5, 9); cv(2, 4)
        k.mfma(s1, k1+4, q1+4)
        ex(9, 13); cv(4, 6)
        k.mfma(O+16*u, KV+16*t+8, p)
        ex(13, 16); cv(6, 8)
    k("s_sub_u32 s35, s35, 1\ns_cmp_lg_u32 s35, 0"); k.br("s_cbranch_scc1", "loop")
    k.mfma(O+48, KV+60, P+12)
    k(f"""v_mov_b32 v8, 0x5f800000
    v_cmp_nlt_f32 s[38:39], v{O+12}, v8
    v_cmp_nlt_f32 vcc, v{O+28}, v8
    s_or_b32 s39, s39, vcc_hi
    v_cmp_nlt_f32 vcc, v{O+44}, v8
    s_or_b32 s39, s39, vcc_hi
    v_cmp_nlt_f32 vcc, v{O+60}, v8
    s_or_b32 s39, s39, vcc_hi
    s_lshl_b32 s38, s5, 2
    v_mov_b32 v8, s39
    v_mov_b32 v9, s38
    v_add_u32 v9, {LFLAG}, v9
    ds_write_b32 v9, v8""")
    red_write(k, O, 's5', LRED, 12288)
    k(f"""s_waitcnt vmcnt(0) lgkmcnt(0)
    s_barrier
    v_mov_b32 v9, {LFLAG}
    ds_read_b128 v[12:15], v9""")
    red_read(k, O, 's5', LRED, 12288)
    k("v_or_b32 v12, v12, v13\nv_or3_b32 v12, v12, v14, v15\nv_readfirstlane_b32 s38, v12\ns_cmp_eq_u32 s38, 0")
    k.br("s_cbranch_scc1", "fin")
    k("s_cmp_eq_u32 s36, 1"); k.br("s_cbranch_scc0", "fin")
    k("s_mov_b32 s36, 64\nv_cmp_gt_u32 vcc, 32, v1")
    for u in range(4): k(f"v_cndmask_b32 v{Q+8*u+6}, 0, v{Q+8*u+6}, vcc\nv_cndmask_b32 v{Q+8*u+7}, 0, v{Q+8*u+7}, vcc")
    k("s_barrier"); k.br("s_branch", "pass")
    k.lab("fin")
    k(f"""v_mov_b32 v8, v{O+12}
    v_mov_b32 v9, v{O+12}
    s_lshl_b32 s6, s4, 1
    s_lshr_b32 s7, s5, 1
    v_permlane32_swap_b32 v8, v9
    s_add_u32 s6, s6, s7
    s_mul_i32 s6, s6, 7
    v_rcp_f32 v9, v9
    s_mul_i32 s7, s3, 56
    s_and_b32 s34, s5, 1
    v_mul_f32 v9, v9, v11
    s_add_u32 s7, s7, s34
    s_lshl_b32 s7, s7, 10
    s_add_u32 s7, s7, {WS_O}""")
    for i in range(16): k(f"v_mul_f32 v{O+i}, v{O+i}, v9")
    for i in range(8): k.cvt(P+i, O+2*i, O+2*i+1)
    for i in range(4):
        k(f"""v_add3_u32 v8, s6, v2, {2*i}
        v_lshrrev_b32 v12, 2, v8
        v_lshlrev_b32 v12, 11, v12
        v_and_b32 v13, 1, v8
        v_lshl_add_u32 v12, v13, 9, v12
        v_and_b32 v13, 2, v8
        v_lshl_add_u32 v12, v13, 2, v12
        v_lshl_add_u32 v12, v3, 4, v12""")
        if i == 3: k("s_mov_b32 exec_hi, 0")
        k.st(P+2*i, 2, 12, WS, 's7')
    k("s_endpgm")
def gemm1(k, W1, WS, B1):
    k(f"""s_and_b32 s3, s2, 7
    s_lshr_b32 s4, s2, 3
    s_and_b32 s6, s3, 1
    s_add_u32 s7, s4, s6
    s_cmp_ge_u32 s7, 25"""); k.br("s_cbranch_scc1", "end")
    k(f"""s_lshr_b32 s3, s3, 1
    s_mul_i32 s3, s3, 49
    s_mul_i32 s6, s6, 25
    s_add_u32 s3, s3, s6
    s_add_u32 s4, s4, s3
    s_mul_i32 s3, s4, 9363
    s_lshr_b32 s3, s3, 16
    s_mul_i32 s6, s3, 7
    s_sub_u32 s4, s4, s6
    s_sub_u32 s5, s5, 4
    s_lshr_b32 s6, s5, 1
    s_and_b32 s7, s5, 1
    s_mul_i32 s40, s5, {2048*D2}
    s_mul_i32 s30, s5, {512*3584}
    s_lshl_b32 s34, s3, 7
    s_add_u32 s30, s30, s34
    s_lshl_b32 s31, s4, 2
    s_add_u32 s31, s31, s5
    s_lshl_b32 s31, s31, 16
    s_add_u32 s31, s31, {WS_HT}
    s_lshl_b32 s35, s6, 6
    s_add_u32 s34, s34, s35""")
    dma_offs(k, 10, 11, 3584); frag_offs(k, 12, 13, 's7'); tr_offs(k, 14, 15, 8, 's6')
    k("v_lshlrev_b32 v7, 3, v2\ns_waitcnt lgkmcnt(0)")
    for i in range(4): k.ld(16+2*i, 2, 7, B1, 's34', 16*i)
    A, TR, FR = 32, 96, 112
    p = dict(dma=(10,11,W1,'s30',16*3584), frag=(12,13,WS,'s31'), trv=(14,15), roff=512, acc=A, w_is_a=True)
    gemm(k, [dict(p, first=s==0) for s in range(32)], D2, FR, TR)
    red_write(k, A, 's5', 0, 2048*D2)
    k("s_waitcnt lgkmcnt(0)\ns_barrier")
    red_read(k, A, 's5', 0, 2048*D2)
    c0 = -2*0.7978845608028654*1.4426950408889634
    for i in range(8): k(f"v_lshlrev_b32 v{48+2*i}, 16, v{16+i}\nv_and_b32 v{49+2*i}, 0xffff0000, v{16+i}")
    k(f"v_mov_b32 v8, {c0!r}\nv_mov_b32 v9, {c0*0.044715!r}")
    for i in range(16): k(f"v_add_f32 v{A+i}, v{A+i}, v{48+i}")
    for i in range(16): k(f"v_mul_f32 v{48+i}, v{A+i}, v{A+i}")
    for i in range(16): k(f"v_fma_f32 v{48+i}, v{48+i}, v9, v8")
    for i in range(16): k(f"v_mul_f32 v{48+i}, v{48+i}, v{A+i}")
    for i in range(16): k(f"v_exp_f32 v{48+i}, v{48+i}")
    for i in range(16): k(f"v_add_f32 v{48+i}, 1.0, v{48+i}")
    for i in range(16): k(f"v_rcp_f32 v{48+i}, v{48+i}")
    for i in range(16): k(f"v_mul_f32 v{A+i}, v{A+i}, v{48+i}")
    for i in range(8): k.cvt(16+i, A+2*i, A+2*i+1)
    k(f"""s_mul_i32 s4, s4, 56
    s_lshl_b32 s3, s3, 1
    s_add_u32 s4, s4, s3
    s_add_u32 s4, s4, s6
    s_lshl_b32 s4, s4, 12
    s_add_u32 s4, s4, {WS_U}""")
    k.st(16, 4, 12, WS, 's4'); k.st(20, 4, 12, WS, 's4', 2048)
def gen_k2():
    k = K("k2_kernel", 256)
    W1, WS, B1 = 8, 12, 16
    k("s_cmp_ge_u32 s2, 256"); k.br("s_cbranch_scc1", "end")
    k.srds(dict(ws=WS, w1=W1, b1=B1))
    k("v_lshrrev_b32 v1, 6, v0\ns_and_b32 s3, s2, 31\nv_readfirstlane_b32 s5, v1\ns_lshr_b32 s4, s2, 5")
    lane_fields(k, 0)
    k("s_cmp_ge_u32 s5, 4"); k.br("s_cbranch_scc1", "g")
    attn(k, WS)
    k.lab("g")
    gemm1(k, W1, WS, B1)
    k.lab("end"); k("s_endpgm")
    return k
```

```python
from gen_common import *
from gen_gemm import *
D3 = 10
K3_LDS = 4*2048*D3
def gen_k3():
    k = K("k3_kernel", 256)
    W2, WO, WS, B2, OUT = 8, 12, 16, 20, 24
    k("s_cmp_ge_u32 s2, 224"); k.br("s_cbranch_scc1", "end")
    k.srds(dict(w2=W2, wo=WO, ws=WS, b2=B2, out=OUT))
    k("v_lshrrev_b32 v1, 6, v0\ns_lshr_b32 s3, s2, 3\nv_readfirstlane_b32 s5, v1")
    lane_fields(k, 0)
    k(f"""s_mul_i32 s4, s3, 9363
    s_lshr_b32 s4, s4, 16
    s_mul_i32 s6, s4, 7
    s_sub_u32 s6, s3, s6
    s_and_b32 s3, s2, 7
    s_lshl_b32 s3, s3, 2
    s_add_u32 s3, s3, s4
    s_mov_b32 s4, s6
    s_lshr_b32 s6, s5, 1
    s_and_b32 s7, s5, 1
    s_mul_i32 s40, s5, {2048*D3}
    s_mul_i32 s30, s5, {448*4096}
    s_lshl_b32 s34, s3, 7
    s_add_u32 s30, s30, s34
    s_mul_i32 s31, s4, 112
    s_mul_i32 s34, s5, 28
    s_add_u32 s31, s31, s34
    s_lshl_b32 s31, s31, 11
    s_add_u32 s31, s31, {WS_U}
    s_mul_i32 s32, s5, {112*896}
    s_lshl_b32 s34, s4, 7
    s_add_u32 s32, s32, s34
    s_mul_i32 s33, s3, 28
    s_mul_i32 s34, s5, 7
    s_add_u32 s33, s33, s34
    s_lshl_b32 s33, s33, 11
    s_add_u32 s33, s33, {WS_O}""")
    dma_offs(k, 10, 11, 4096); frag_offs(k, 12, 13, 's6'); tr_offs(k, 14, 15, 4, 's7')
    dma_offs(k, 16, 17, 896); frag_offs(k, 18, 19, 's7'); tr_offs(k, 20, 21, 4, 's6')
    k(f"""s_lshl_b32 s34, s3, 1
    s_add_u32 s34, s34, s7
    v_lshl_add_u32 v22, s34, 5, v3
    v_lshlrev_b32 v7, 2, v22
    v_xor_b32 v8, 128, v7
    v_lshlrev_b32 v9, 1, v22
    s_mov_b32 s34, {WS_G}
    s_waitcnt lgkmcnt(0)""")
    k.ld(23, 1, 7, WS, 's34'); k.ld(24, 1, 8, WS, 's34')
    k(f"buffer_load_ushort v25, v9, {R(B2,4,'s')}, 0 offen")
    A1, A2, TR, FR = 32, 96, 160, 176
    p1 = dict(dma=(10,11,W2,'s30',65536), frag=(12,13,WS,'s31'), trv=(14,15), roff=1024, acc=A1, w_is_a=False)
    p2 = dict(dma=(16,17,WO,'s32',16*896), frag=(18,19,WS,'s33'), trv=(20,21), roff=1024, acc=A2, w_is_a=True)
    gemm(k, [dict(p1, first=s==0) for s in range(28)] + [dict(p2, first=s==0) for s in range(7)], D3, FR, TR)
    k("v_sub_f32 v23, 1.0, v23\nv_sub_f32 v24, 1.0, v24\nv_lshlrev_b32 v25, 16, v25")
    for i in range(16): k(f"v_add_f32 v{A1+i}, v{A1+i}, v25")
    for u in (1, 2, 3, 0):
        for i in range(16): k(f"v_fmac_f32 v{A2+16*u+i}, v{A1+16*u+i}, v{23+(u&1)}")
    red_write(k, A2, 's5', 0, 2048*D3)
    k("s_waitcnt lgkmcnt(0)\ns_barrier")
    red_read(k, A2, 's5', 0, 2048*D3)
    k(f"""v_mul_u32_u24 v7, 896, v22
    v_lshl_add_u32 v7, v2, 4, v7
    s_lshl_b32 s34, s4, 1
    s_add_u32 s34, s34, s6
    s_lshl_b32 s34, s34, 6""")
    for h in range(2):
        b = A2 + 8*h; t = 32 + 4*h
        k.cvt(t, b, b+1); k.cvt(t+1, b+2, b+3); k.cvt(t+2, b+4, b+5); k.cvt(t+3, b+6, b+7)
        k(f"v_permlane32_swap_b32 v{t}, v{t+2}\nv_permlane32_swap_b32 v{t+1}, v{t+3}")
        k.st(t, 4, 7, OUT, 's34', 32*h)
    k.lab("end"); k("s_endpgm")
    return k
```

```python
import re
TRANS = ('v_exp_','v_log_','v_rcp_','v_rsq_','v_sqrt_')
def regs(tok):
    tok = tok.strip().lstrip('-').replace('abs(','').rstrip(')').strip('|')
    m = re.fullmatch(r'([vs])\[(\d+):(\d+)\]', tok)
    if m: return {(m[1], i) for i in range(int(m[2]), int(m[3])+1)}
    m = re.fullmatch(r'([vs])(\d+)', tok)
    if m: return {(m[1], int(m[2]))}
    if tok in ('vcc','m0','exec'): return {(tok, 0)}
    return set()
def parse(l):
    l = l.strip(); op, _, rest = l.partition(' ')
    ops = [t.split()[0] if t.split() else '' for t in rest.split(',')]
    rs = [regs(t) for t in ops]
    U = lambda x: set().union(*x) if x else set()
    d = dict(op=op, w=set(), r=set(), c=set(), kind='s', dpp='_dpp' in op, lds=l.endswith(' lds'))
    if op.startswith('v_mfma'): d.update(kind='m', w=rs[0], r=rs[1]|rs[2], c=rs[3])
    elif op.startswith('v_permlane'): d.update(kind='v', w=rs[0]|rs[1], r=rs[0]|rs[1])
    elif op.startswith('v_'):
        d.update(kind='v', w=rs[0], r=U(rs[1:]) | (rs[0] if 'fmac' in op or 'dot2c' in op else set()))
    elif op.startswith('buffer_load') and not d['lds']: d.update(kind='x', w=rs[0], r=U(rs[1:]))
    elif op.startswith('buffer_') or op.startswith('ds_write'): d.update(kind='x', r=U(rs), sd=rs[0] if 'x4' in op and 'store' in op else set())
    elif op.startswith('ds_'): d.update(kind='x', w=rs[0], r=U(rs[1:]))
    elif op.startswith('s_') and rs: d.update(w=rs[0], r=U(rs[1:]))
    return d
def need(p, c):
    n = 0; sg = lambda x: {y for y in x if y[0] != 'v'}; vg = lambda x: {y for y in x if y[0] == 'v'}
    if p['kind'] == 'v':
        if c['kind'] == 'v' and sg(p['w']) & c['r']: n = max(n, 2)
        if c['kind'] == 'x' and sg(p['w']) & c['r']: n = max(n, 5)
        if vg(p['w']) & c['r']:
            if c['dpp'] or c['op'].startswith('v_permlane'): n = max(n, 2)
            if c['op'].startswith('v_read'): n = max(n, 1)
            if p['op'].startswith(TRANS) and c['kind'] == 'v': n = max(n, 1)
        if c['kind'] == 'm' and p['w'] & (c['r'] | c['c']): n = max(n, 2)
    if p['kind'] == 'm':
        if c['kind'] == 'm':
            if p['w'] & c['r']: n = max(n, 12)
            if p['w'] & c['c'] and p['w'] != c['c']: n = max(n, 10)
        elif p['w'] & (c['r'] | c['w']): n = max(n, 12)
        if c['kind'] == 'v' and p['c'] & c['w']: n = max(n, 7)
    if p['kind'] == 's' and ('m0', 0) in p['w'] and c['lds']: n = max(n, 1)
    if p.get('sd') and p['sd'] & c['w']: n = max(n, 2)
    return n
def pad(L):
    out, hist, tot = [], [], 0
    for l in L:
        if l.endswith(':'): out.append(l); continue
        c = parse(l); dist = 0; n = 0
        for p, ws in reversed(hist[-14:]):
            n = max(n, need(p, c) - dist); dist += ws
        if n > 0:
            out.append(f" s_nop {n-1}"); hist.append((parse("s_nop 0"), n)); tot += n
        out.append(l)
        hist.append((c, int(l.split()[1]) + 1 if c['op'] == 's_nop' else 1))
    return out
```

```python
import sys
from gen_common import *
from hazard import pad
from gen_k1 import *
from gen_k2 import *
from gen_k3 import *
ks = [(gen_k1(), 256, 512, K1_LDS), (gen_k2(), 256, 512, K2_LDS), (gen_k3(), 224, 256, K3_LDS)]
t = "".join(f"; @launch kernel={k.name} grid=({g},1,1) block=({b},1,1) lds={l}\n" for k, g, b, l in ks)
t += '.amdgcn_target "amdgcn-amd-amdhsa--gfx950"\n'
for k, *_ in ks:
    k.L = pad(k.L); t += k.text()
open(sys.argv[1] if len(sys.argv) > 1 else "gated_mix__grouped_kv_mqa__mixer_token_mlp__prompt.s", "w").write(t)
```

```python
import os
ENV = lambda n, d=0: int(os.environ.get(n, d))
STAMP = int(os.environ.get('STAMP', 0))
WS_Q, WS_KV, WS_HT, WS_U, WS_O, WS_G, WS_END = 0, 0x200000, 0x280000, 0x480000, 0x680000, 0x880000, 0x980000
WS_FU, WS_FO, WS_FH, WS_FK = 0x900000, 0x920000, 0x940000, 0x960000
FB = ENV('FB', 7)
ARG = dict(x=0, wq=8, wk=16, wv=24, wo=32, w1=48, b1=56, w2=64, b2=72, gw=80, out=88, dbg=96, ws=104)
SIZE = dict(x=1835008, wq=401408, wk=25088, wv=25088, wo=401408, w1=7340032, b1=3584, w2=7340032, b2=4096,
            gw=896, out=1835008, dbg=256, ws=WS_END)
def R(a, n, p='v'): return f"{p}[{a}:{a+n-1}]" if n > 1 else f"{p}{a}"
class K:
    def __init__(s, name, nv=256):
        s.name, s.nv, s.L = name, nv, []
    def __call__(s, t):
        for l in t.strip().split("\n"): s.L.append(" " + l.strip())
    def lab(s, n): s.L.append(f"{s.name}_{n}:")
    def br(s, op, n): s(f"{op} {s.name}_{n}")
    def srds(s, m):
        for nm, r in m.items(): s(f"s_load_dwordx2 {R(r,2,'s')}, s[0:1], {ARG[nm]}")
        for nm, r in m.items(): s(f"s_mov_b32 s{r+2}, {SIZE[nm]}\ns_mov_b32 s{r+3}, 0x20000")
    def mfma(s, d, a, b, c=None):
        cc = R(d,16) if c is None else c
        s(f"v_mfma_f32_32x32x16_bf16 {R(d,16)}, {R(a,4)}, {R(b,4)}, {cc}")
    def ld(s, d, n, voff, srd, soff=0, off=0, fl=''):
        op = {1:'dword',2:'dwordx2',4:'dwordx4'}[n]
        s(f"buffer_load_{op} {R(d,n)}, v{voff}, {R(srd,4,'s')}, {soff} offen offset:{off} {fl}")
    def st(s, d, n, voff, srd, soff=0, off=0, fl=''):
        op = {1:'dword',2:'dwordx2',4:'dwordx4'}[n]
        s(f"buffer_store_{op} {R(d,n)}, v{voff}, {R(srd,4,'s')}, {soff} offen offset:{off} {fl}")
    def dma(s, voff, srd, soff=0, off=0, fl=''):
        s(f"buffer_load_dwordx4 v{voff}, {R(srd,4,'s')}, {soff} offen offset:{off} {fl} lds")
    def tr(s, d, va, off): s(f"ds_read_b64_tr_b16 {R(d,2)}, v{va} offset:{off}")
    def cvt(s, d, a, b): s(f"v_cvt_pk_bf16_f32 v{d}, v{a}, v{b}")
    def stamp(s, i):
        if STAMP: s(f"s_memrealtime s[{64+2*i}:{65+2*i}]\ns_waitcnt lgkmcnt(0)")
    def finish(s, idx):
        if not STAMP: return
        s.L = [f" s_branch {s.name}_stamp" if l.strip() == "s_endpgm" else l for l in s.L]
        s.L = [f" s_mov_b32 s{64+2*i}, 0" for i in range(1, 14)] + [" s_memrealtime s[64:65]", " s_memtime s[92:93]"] + s.L
        s.lab("stamp")
        s(f"""s_mov_b64 exec, -1
        s_waitcnt vmcnt(0) lgkmcnt(0)
        s_memrealtime s[90:91]
        s_memtime s[94:95]
        s_load_dwordx2 s[96:97], s[0:1], {ARG['ws']}
        s_mov_b32 s98, 0x1000000
        s_mov_b32 s99, 0x20000
        v_lshrrev_b32 v1, 6, v0
        v_lshl_add_u32 v1, s2, 3, v1
        v_lshlrev_b32 v1, 6, v1
        v_add_u32 v1, {0xa00000 + idx*0x40000}, v1
        s_waitcnt lgkmcnt(0)
        s_sub_u32 s92, s94, s92""")
        s("s_getreg_b32 s94, hwreg(HW_REG_XCC_ID)")
        for i in range(16):
            s(f"v_mov_b32 v2, s{64+2*i}"); s.st(2, 1, 1, 96, 0, 4*i)
        s("s_endpgm")
    def text(s):
        n = s.name
        return (f".text\n.globl {n}\n.p2align 8\n.type {n},@function\n{n}:\n" + "\n".join(s.L) +
f"""
.section .rodata,"a"
.p2align 6
.amdhsa_kernel {n}
  .amdhsa_next_free_vgpr {s.nv}
  .amdhsa_next_free_sgpr 102
  .amdhsa_accum_offset {min(s.nv,256)}
  .amdhsa_group_segment_fixed_size 0
  .amdhsa_kernarg_size 112
  .amdhsa_user_sgpr_count 2
  .amdhsa_user_sgpr_kernarg_segment_ptr 1
  .amdhsa_system_sgpr_workgroup_id_x 1
.end_amdhsa_kernel
""")
def lane_fields(k, trrow):
    k("""v_and_b32 v1, 63, v0
    v_lshrrev_b32 v2, 5, v1
    v_and_b32 v3, 31, v1
    v_bfe_u32 v4, v1, 2, 2
    v_and_b32 v5, 16, v1
    v_and_b32 v6, 3, v1
    v_lshlrev_b32 v5, 1, v5
    v_lshl_add_u32 v5, v6, 3, v5""")
```

```python
from gen_common import *
from gen_gemm import *
LX, LWQ, LHL, LE, LC, LDS = 0, 57344, 107520, 121856, 162816, 162944
LRED, LFLAG = LWQ, LC
CA, CG1, CG2, CG3, CX, CW, CQ1, CQ2, CH, CK = [LC + 16 + 4*i for i in range(10)]
TAG, DW, DF, DBG = 's60', 12, 8, 56
Q, O, S, P, KV, MX = 16, 48, 112, 144, 160, 224
def proj(k, wstride, swap, acc=64):
    def rd(s):
        b = 16 + (s % 4) * 8
        k(f"ds_read_b128 {R(b,4)}, v{10+s%4} offset:{128*(s//4)}")
        k.tr(b+4, 14, 16*wstride*s); k.tr(b+6, 14, 16*wstride*s + 4*wstride)
    for s in range(3): rd(s)
    for s in range(28):
        if s + 3 < 28: rd(s+3)
        k(f"s_waitcnt lgkmcnt({3*min(3, 27-s)})")
        b = 16 + (s % 4) * 8
        a_, b_ = (b, b+4) if swap else (b+4, b)
        k.mfma(acc, a_, b_, '0' if s == 0 else None)
    k("s_nop 7\ns_nop 7")
def xbases(k, sth):
    k(f"""v_lshl_add_u32 v7, {sth}, 5, v3
    v_bfe_u32 v8, v7, 1, 3
    v_mul_u32_u24 v7, 896, v7""")
    for b in range(4):
        k(f"v_or_b32 v9, {2*b}, v2\nv_xor_b32 v9, v9, v8\nv_lshl_add_u32 v{10+b}, v9, 4, v7")
def aprep(k, X, WQ, WS):
    k("""s_mul_i32 s6, s3, 57344
    s_mul_i32 s7, s5, 14336
    s_add_u32 s6, s6, s7
    s_mov_b32 m0, s7""")
    for i in range(14):
        k(f"""v_add_u32 v7, {64*i}, v1
        v_mul_u32_u24 v8, 1171, v7
        v_lshrrev_b32 v8, 17, v8
        v_xor_b32 v7, v7, v8
        v_lshlrev_b32 v7, 4, v7""")
        k.dma(7, X, 's6'); k("s_add_u32 m0, m0, 1024")
    k(f"s_mul_i32 s7, s5, 12288\ns_add_u32 m0, s7, {LWQ}\ns_mul_i32 s6, s4, 112\ns_mul_i32 s7, s5, 768\nv_add_u32 v9, s7, v1")
    for i in range(13):
        k(f"""v_add_u32 v7, {64*i}, v9
        v_mul_u32_u24 v8, 9363, v7
        v_lshrrev_b32 v8, 16, v8
        v_mul_u32_u24 v8, 784, v8
        v_lshl_add_u32 v7, v7, 4, v8""")
        k.dma(7, WQ, 's6'); k("s_add_u32 m0, m0, 1024")
    k("s_and_b32 s44, s2, 7\ns_lshr_b32 s45, s2, 3"); w1pref(k, 20)
    k("s_and_b32 s6, s5, 1\ns_lshr_b32 s7, s5, 1\ns_mul_i32 s7, s7, 56")
    xbases(k, 's6')
    k(f"""v_lshl_add_u32 v14, v2, 3, v4
    v_mul_u32_u24 v14, 112, v14
    v_add3_u32 v14, v14, v5, s7
    v_add_u32 v14, {LWQ}, v14
    s_waitcnt vmcnt(14)""")
    arrive(k, CX); k("s_waitcnt vmcnt(1)"); arrive(k, CW); k.stamp(3); lwait(k, CW, 4)
    proj(k, 112, False)
    arrive(k, CQ1)
    for i in range(16): k(f"v_mul_f32 v{64+i}, {28**-0.5*1.4426950408889634!r}, v{64+i}")
    k("v_cmp_gt_u32 vcc, 32, v1")
    for i in range(8): k.cvt(16+i, 64+2*i, 65+2*i)
    k(f"""v_cndmask_b32 v22, 0, v22, vcc
    v_cndmask_b32 v23, 0, v23, vcc
    v_lshlrev_b32 v10, 4, v1
    s_lshl_b32 s6, s5, 11
    v_add_u32 v7, s6, v10""")
    lwait(k, CQ1, 4)
    k(f"ds_write_b128 v7, v[16:19] offset:{LWQ}\nds_write_b128 v7, v[20:23] offset:{LWQ+1024}")
    arrive(k, CQ2); k.stamp(4)
    get_nonce(k, DBG)
    k(f"""s_lshl_b32 s6, s5, {5+FB}
    v_lshl_add_u32 v12, v3, {FB}, s6
    v_add_u32 v12, {WS_FK-WS_FU}, v12
    s_lshl_b32 s6, s3, {2+FB}
    v_lshl_add_u32 v13, v6, {FB}, s6
    v_add_u32 v13, {WS_FH-WS_FU}, v13
    v_mov_b32 v14, {WS_FK-WS_FU}
    v_cmp_gt_u32 vcc, 48, v1
    v_cndmask_b32 v13, v14, v13, vcc
    v_cmp_gt_u32 vcc, 32, v1
    v_cndmask_b32 v12, v13, v12, vcc
    s_mov_b32 s6, {WS_FU}""")
    lwait(k, CQ2, 4)
    for u in range(1, 4):
        k(f"v_xor_b32 v8, {2048*u}, v7\nds_read_b128 {R(Q+8*u,4)}, v8 offset:{LWQ}\nds_read_b128 {R(Q+8*u+4,4)}, v8 offset:{LWQ+1024}")
    poll(k, 12, WS, 's6', TAG); k.stamp(5)
def attn(k, WS):
    k(f"""s_lshl_b32 s31, s5, 16
    s_add_u32 s31, s31, {WS_KV}
    s_lshl_b32 s7, s3, 1
    s_and_b32 s34, s5, 1
    s_add_u32 s7, s7, s34
    v_lshl_add_u32 v7, s7, 5, v3
    v_lshlrev_b32 v7, 2, v7
    s_mov_b32 s34, {WS_G}
    s_mov_b32 s36, 1
    s_mov_b32 s37, 0
    s_waitcnt lgkmcnt(0)""")
    k.ld(11, 1, 7, WS, 's34', 0, 'sc1')
    if ENV('NOA'): k("s_waitcnt vmcnt(0)"); k.br("s_branch", "fin")
    k.lab("pass")
    k(f"s_mov_b32 s30, {WS_KV}\ns_mov_b32 s35, s36")
    for u in range(4): k(f"v_mov_b32 v{MX+u}, 0xff800000")
    k.lab("mx")
    k.ld(MX+8, 4, 10, WS, 's30', 0, 'sc1'); k.ld(MX+12, 4, 10, WS, 's30', 1024, 'sc1')
    k("s_add_u32 s30, s30, 4096\ns_sub_u32 s35, s35, 1\ns_cmp_lg_u32 s35, 0"); k.br("s_cbranch_scc1", "nopre")
    k("s_mov_b32 s30, s31")
    for t in range(3):
        for i in range(4): k.ld(KV+16*t+4*i, 4, 10, WS, 's30', 1024*i, 'sc1')
        k("s_add_u32 s30, s30, 4096")
    k("s_waitcnt vmcnt(12)"); k.br("s_branch", "mx2")
    k.lab("nopre"); k("s_waitcnt vmcnt(0)")
    k.lab("mx2")
    k.stamp(1)
    for u in range(4):
        k.mfma(O+16*u, MX+8, Q+8*u, '0'); k.mfma(O+16*u, MX+12, Q+8*u+4)
    for u in range(4):
        for i in range(8): k(f"v_max3_f32 v{MX+u}, v{O+16*u+2*i}, v{O+16*u+2*i+1}, v{MX+u}")
    k("s_cmp_lg_u32 s35, 0"); k.br("s_cbranch_scc1", "mx")
    k("v_cmp_gt_u32 vcc, 32, v1")
    for u in range(4): k(f"v_mov_b32 v{MX+4+u}, v{MX+u}")
    for u in range(4): k(f"v_permlane32_swap_b32 v{MX+u}, v{MX+4+u}")
    for u in range(4):
        m, t = MX+u, MX+4+u
        k(f"""v_max_f32 v{m}, v{m}, v{t}
        v_xor_b32 v{m}, 0x80000000, v{m}
        v_and_b32 v{t}, 0xffff0000, v{m}
        v_sub_f32 v{m}, v{m}, v{t}
        v_lshrrev_b32 v{t}, 16, v{t}
        v_and_b32 v8, 0xffff0000, v{m}
        v_sub_f32 v{m}, v{m}, v8
        v_or_b32 v{t}, v{t}, v8
        v_lshrrev_b32 v{m}, 16, v{m}
        v_cndmask_b32 v{Q+8*u+6}, v{t}, v{Q+8*u+6}, vcc
        v_cndmask_b32 v{Q+8*u+7}, v{m}, v{Q+8*u+7}, vcc""")
    for i in range(64): k(f"v_mov_b32 v{O+i}, 0")
    for i in range(4): k(f"v_mov_b32 v{P+12+i}, 0\nv_mov_b32 v{KV+60+i}, 0")
    k("s_waitcnt vmcnt(8)\ns_mov_b32 s35, 4")
    k.mfma(S, KV, Q, '0'); k.mfma(S, KV+4, Q+4)
    k("s_nop 11")
    k.stamp(2)
    k.lab("loop")
    for n in range(16):
        t, u = n >> 2, n & 3
        s, p = S + 16*(n & 1), P + 8*(n & 1)
        n1 = (n+1) & 15; s1, k1, q1 = S + 16*(n1 & 1), KV + 16*(n1 >> 2), Q + 8*(n1 & 3)
        n0 = (n-1) & 15
        ex = lambda a, b: [k(f"v_exp_f32 v{s+i}, v{s+i}") for i in range(a, b)]
        cv = lambda a, b: [k.cvt(p+i, s+2*i, s+2*i+1) for i in range(a, b)]
        if u == 3: k("s_waitcnt vmcnt(8)")
        k.mfma(s1, k1, q1, '0')
        ex(0, 5); cv(0, 2)
        k.mfma(O+16*(n0 & 3), KV+16*(n0 >> 2)+12, P+8*(n0 & 1)+4)
        if u == 0:
            k("s_setprio 3")
            for i in range(4): k.ld(KV+16*((t+3) & 3)+4*i, 4, 10, WS, 's30', 1024*i, 'sc1')
            k(f"s_setprio {ENV('PRIOA')}")
            k("s_add_u32 s30, s30, 4096")
        ex(5, 9); cv(2, 4)
        k.mfma(s1, k1+4, q1+4)
        ex(9, 13); cv(4, 6)
        k.mfma(O+16*u, KV+16*t+8, p)
        ex(13, 16); cv(6, 8)
    k("s_sub_u32 s35, s35, 1\ns_cmp_lg_u32 s35, 0"); k.br("s_cbranch_scc1", "loop")
    k.mfma(O+48, KV+60, P+12)
    k(f"""v_mov_b32 v8, 0x5f800000
    v_cmp_nlt_f32 s[38:39], v{O+12}, v8
    v_cmp_nlt_f32 vcc, v{O+28}, v8
    s_or_b32 s39, s39, vcc_hi
    v_cmp_nlt_f32 vcc, v{O+44}, v8
    s_or_b32 s39, s39, vcc_hi
    v_cmp_nlt_f32 vcc, v{O+60}, v8
    s_or_b32 s39, s39, vcc_hi
    s_lshl_b32 s38, s5, 2
    v_mov_b32 v8, s39
    v_mov_b32 v9, s38
    v_add_u32 v9, {LFLAG}, v9
    ds_write_b32 v9, v8""")
    k("s_setprio 3"); k.stamp(8); red_write(k, O, 's5', LRED, 12288)
    arrive(k, CA); k("s_add_u32 s37, s37, 4"); lwait(k, CA, 's37'); k.stamp(9)
    k(f"""v_mov_b32 v9, {LFLAG}
    ds_read_b128 v[12:15], v9""")
    red_read(k, O, 's5', LRED, 12288)
    k("v_or_b32 v12, v12, v13\nv_or3_b32 v12, v12, v14, v15\nv_readfirstlane_b32 s38, v12\ns_cmp_eq_u32 s38, 0")
    k.br("s_cbranch_scc1", "fin")
    k("s_cmp_eq_u32 s36, 1"); k.br("s_cbranch_scc0", "fin")
    k("s_mov_b32 s36, 64\nv_cmp_gt_u32 vcc, 32, v1")
    for u in range(4): k(f"v_cndmask_b32 v{Q+8*u+6}, 0, v{Q+8*u+6}, vcc\nv_cndmask_b32 v{Q+8*u+7}, 0, v{Q+8*u+7}, vcc")
    arrive(k, CA); k("s_add_u32 s37, s37, 4"); lwait(k, CA, 's37'); k("s_waitcnt vmcnt(0)"); k.br("s_branch", "pass")
    k.lab("fin")
    k(f"""v_mov_b32 v8, v{O+12}
    v_mov_b32 v9, v{O+12}
    s_lshl_b32 s6, s4, 1
    s_lshr_b32 s7, s5, 1
    v_permlane32_swap_b32 v8, v9
    s_add_u32 s6, s6, s7
    s_mul_i32 s6, s6, 7
    v_rcp_f32 v9, v9
    s_mul_i32 s7, s3, 56
    s_and_b32 s34, s5, 1
    v_mul_f32 v9, v9, v11
    s_add_u32 s7, s7, s34
    s_lshl_b32 s7, s7, 10
    s_add_u32 s7, s7, {WS_O}""")
    for i in range(16): k(f"v_mul_f32 v{O+i}, v{O+i}, v9")
    for i in range(8): k.cvt(P+i, O+2*i, O+2*i+1)
    for i in range(4):
        k(f"""v_add3_u32 v8, s6, v2, {2*i}
        v_lshrrev_b32 v12, 2, v8
        v_lshlrev_b32 v12, 11, v12
        v_and_b32 v13, 1, v8
        v_lshl_add_u32 v12, v13, 9, v12
        v_and_b32 v13, 2, v8
        v_lshl_add_u32 v12, v13, 2, v12
        v_lshl_add_u32 v12, v3, 4, v12""")
        if i == 3: k("s_mov_b32 exec_hi, 0")
        k.st(P+2*i, 2, 12, WS, 's7', 0, 'sc1')
    k(f"s_lshl_b32 s6, s3, 3\ns_add_u32 s6, s6, s4\ns_lshl_b32 s6, s6, 2\ns_add_u32 s6, s6, s5\ns_lshl_b32 s6, s6, {FB}\ns_add_u32 s6, s6, {WS_FO}")
    publish(k, WS, 's6', TAG)
    k("s_endpgm")
def gprep(k, X, GW, WK, W1, WS, ringfill):
    k("s_cmp_eq_u32 s4, 7"); k.br("s_cbranch_scc1", "kv")
    k("s_cmp_ge_u32 s4, 4"); k.br("s_cbranch_scc1", "gp_done")
    k(f"""s_lshl_b32 s36, s3, 2
    s_add_u32 s36, s36, s4
    s_lshl_b32 s37, s36, 2
    s_add_u32 s37, s37, s5
    v_lshl_add_u32 v50, s37, 2, v2
    v_lshlrev_b32 v7, 4, v3
    v_mov_b32 v9, 0x7ff00000
    v_cmp_gt_u32 vcc, 28, v3
    v_mul_u32_u24 v8, 896, v50
    v_cndmask_b32 v7, v9, v7, vcc
    v_add_u32 v8, v8, v7""")
    for i, o in enumerate((0, 448, 1792, 2240)): k.ld(52+4*i, 4, 8, X, 0, o)
    k.ld(68, 4, 7, GW); k.ld(72, 4, 7, GW, 0, 448)
    k("s_waitcnt vmcnt(0)")
    XR, GR = 80, 112
    for i in range(24): k(f"v_lshlrev_b32 v{XR+2*i}, 16, v{52+i}\nv_and_b32 v{XR+2*i+1}, 0xffff0000, v{52+i}")
    for r in range(2): k(f"v_mov_b32 v{40+r}, v{XR+16*r}\nv_mul_f32 v{42+r}, v{XR+16*r}, v{GR}")
    for i in range(1, 16):
        for r in range(2): k(f"v_add_f32 v{40+r}, v{40+r}, v{XR+16*r+i}\nv_fmac_f32 v{42+r}, v{XR+16*r+i}, v{GR+i}")
    def red(regs):
        for m in ("quad_perm:[1,0,3,2]", "quad_perm:[2,3,0,1]", "row_half_mirror", "row_mirror"):
            for r in regs: k(f"v_add_f32_dpp v{r}, v{r}, v{r} {m} row_mask:0xf bank_mask:0xf")
        for r in regs: k(f"ds_swizzle_b32 v{r+6}, v{r} offset:0x401F")
        k("s_waitcnt lgkmcnt(0)")
        for r in regs: k(f"v_add_f32 v{r}, v{r}, v{r+6}")
    red([40, 41, 42, 43])
    for r in range(2): k(f"v_mul_f32 v{40+r}, {1/448!r}, v{40+r}\nv_mul_f32 v{42+r}, -1.4426950408889634, v{42+r}\nv_mov_b32 v{128+r}, 0\nv_exp_f32 v{42+r}, v{42+r}")
    for i in range(16):
        for r in range(2): k(f"v_sub_f32 v{XR+16*r+i}, v{XR+16*r+i}, v{40+r}")
        for r in range(2): k(f"v_fmac_f32 v{128+r}, v{XR+16*r+i}, v{XR+16*r+i}")
    for r in range(2): k(f"v_cndmask_b32 v{128+r}, 0, v{128+r}, vcc\nv_add_f32 v{42+r}, 1.0, v{42+r}\nv_rcp_f32 v{42+r}, v{42+r}")
    red([128, 129])
    for r in range(2): k(f"v_mov_b32 v{40+r}, 1e-5\nv_fmac_f32 v{40+r}, {1/448!r}, v{128+r}\nv_rsq_f32 v{40+r}, v{40+r}")
    k(f"""v_and_b32 v9, 15, v50
    v_mul_u32_u24 v8, 896, v9
    v_lshl_add_u32 v8, v3, 4, v8
    v_add_u32 v8, {LHL}, v8
    v_lshlrev_b32 v9, 2, v9
    v_add_u32 v9, {LC+64}, v9
    ds_write_b32 v9, v42
    ds_write_b32 v9, v43 offset:8""")
    for i in range(32): k(f"v_mul_f32 v{XR+i}, v{XR+i}, v{40+i//16}")
    for i in range(16): k.cvt(52+i, XR+2*i, XR+2*i+1)
    k("s_mov_b64 exec, vcc")
    for i, o in enumerate((0, 448, 1792, 2240)): k(f"ds_write_b128 v8, {R(52+4*i,4)} offset:{o}")
    arrive(k, CH)
    k(f"""v_lshl_add_u32 v7, v2, 3, v4
    v_mul_u32_u24 v7, 896, v7
    s_lshl_b32 s37, s5, 7
    v_add3_u32 v7, v7, v5, s37
    v_add_u32 v7, {LHL}, v7
    s_add_u32 s49, s5, 4
    s_min_u32 s49, s49, 6
    s_sub_u32 s49, s49, s5
    s_lshl_b32 s42, s49, 7
    v_add_u32 v40, s42, v7
    s_add_u32 s37, s37, s36
    v_and_b32 v41, 15, v1
    v_lshlrev_b32 v41, 2, v41
    v_add_u32 v42, {LC+64}, v41
    v_lshlrev_b32 v43, 4, v1""")
    lwait(k, CH, 4)
    for i in range(4): k.tr(52+4*i, (7, 40)[i//2], 64*(i&1)); k.tr(54+4*i, (7, 40)[i//2], 64*(i&1) + 3584)
    k(f"""ds_read_b32 v42, v42
    s_lshl_b32 s42, s37, 11
    s_add_u32 s42, s42, {WS_HT}
    s_lshl_b32 s43, s49, 18
    s_add_u32 s43, s43, s42
    s_lshl_b32 s36, s36, 6
    s_add_u32 s36, s36, {WS_G}
    s_waitcnt lgkmcnt(0)""")
    for i in range(4): k.st(52+4*i, 4, 43, WS, ('s42', 's43')[i//2], 1024*(i&1), 'sc1')
    k.st(42, 1, 41, WS, 's36', 0, 'sc1')
    get_nonce(k, DBG)
    k(f"""s_lshl_b32 s37, s37, {FB}
    s_add_u32 s37, s37, {WS_FH}
    s_lshl_b32 s49, s49, {7+FB}
    v_mul_u32_u24 v8, s49, v1
    v_mov_b32 v9, s60
    s_waitcnt vmcnt(0)
    s_mov_b64 exec, 3""")
    k.st(9, 1, 8, WS, 's37', 0, 'sc1'); k("s_mov_b64 exec, -1"); k.stamp(11)
    k.br("s_branch", "gp_done")
    k.lab("kv")
    k(f"""s_cmp_eq_u32 s6, 1
    s_cselect_b32 s{WK}, s62, s{WK}
    s_cselect_b32 s{WK+1}, s63, s{WK+1}
    s_mul_i32 s36, s6, 26624
    s_add_u32 s36, s36, {LHL}
    s_lshl_b32 s37, s7, 10
    s_add_u32 m0, s36, s37
    v_lshl_add_u32 v7, v1, 4, s37""")
    for i in range(13): k.dma(7, WK); k("s_add_u32 m0, m0, 2048\nv_add_u32 v7, 2048, v7")
    xbases(k, 's7')
    k(f"""v_lshl_add_u32 v14, v2, 3, v4
    v_mul_u32_u24 v14, 56, v14
    v_add3_u32 v14, v14, v5, s36
    s_lshl_b32 s36, s3, 1
    s_add_u32 s36, s36, s7
    s_lshl_b32 s36, s36, 1
    s_add_u32 s36, s36, s6
    s_lshl_b32 s37, s36, {FB}
    s_add_u32 s37, s37, {WS_FK}
    s_lshl_b32 s36, s36, 11
    s_add_u32 s36, s36, {WS_KV}
    s_waitcnt vmcnt(0)""")
    arrive(k, CK); lwait(k, CK, 4); lwait(k, CX, 4)
    k("s_cmp_eq_u32 s6, 1"); k.br("s_cbranch_scc1", "vv")
    proj(k, 56, False)
    k("v_cmp_gt_u32 vcc, 32, v1\nv_mov_b32 v8, 0x3f803f80\nv_mov_b32 v9, 0x3f80")
    for i in range(8): k.cvt(16+i, 64+2*i, 65+2*i)
    k("v_cndmask_b32 v22, v8, v22, vcc\nv_cndmask_b32 v23, v9, v23, vcc")
    k.br("s_branch", "st2")
    k.lab("vv")
    proj(k, 56, True)
    k("""v_cmp_eq_u32 vcc, 28, v3
    v_mov_b32 v8, 0x3f803f80
    v_cndmask_b32 v8, 0, v8, vcc
    v_cmp_gt_u32 vcc, 28, v3""")
    for i in range(8): k.cvt(16+i, 64+2*i, 65+2*i)
    for i in range(8): k(f"v_cndmask_b32 v{16+i}, v8, v{16+i}, vcc")
    k.lab("st2")
    arrive(k, CK)
    k("v_lshlrev_b32 v7, 4, v1")
    k.st(16, 4, 7, WS, 's36', 0, 'sc1'); k.st(20, 4, 7, WS, 's36', 1024, 'sc1')
    get_nonce(k, DBG)
    publish(k, WS, 's37', TAG); k.stamp(11)
    lwait(k, CK, 8)
    k.lab("gp_done")
def w1pref(k, W1):
    k(f"""s_mul_i32 s42, s44, 7
    s_lshr_b32 s42, s42, 1
    s_lshl_b32 s42, s42, 7
    s_lshl_b32 s43, s45, 2
    s_add_u32 s43, s43, s5
    s_mul_i32 s43, s43, {16*3584}
    s_add_u32 s42, s42, s43
    v_lshrrev_b32 v7, 2, v1
    v_mul_u32_u24 v7, 3584, v7
    v_lshl_add_u32 v7, v6, 7, v7""")
    k.ld(254, 1, 7, W1, 's42')
```

```python
from gen_common import *
NE = 5
LW, LF = ENV('LW', 5), ENV('LF', 4)
class Gemm:
    def __init__(g, k, steps, DW, DF, FR, TR):
        g.k, g.st, g.DW, g.DF, g.FR, g.TR = k, steps, DW, DF, FR, TR
        g.q, g.nW, g.nF = [], 0, 0
    def wrap(g, p, so, inc):
        if 'wrap' in p and (p['i'] + 1) % p['wrap'][0] == 0 and p['i'] + 1 < p['wrap'][2]:
            per, sr, ln = p['wrap']
            g.k(f"s_cmp_eq_u32 {sr}, {(p['i']+1)//per}\ns_cselect_b32 s42, {ln*inc}, 0\ns_sub_u32 {so}, {so}, s42")
    def loadW(g):
        s = g.nW; g.nW += 1; p = g.st[s]; k = g.k
        v0, v1, srd, so, inc = p['dma']
        sl = s % g.DW
        k(f"s_add_u32 m0, s40, {2048*sl}" if sl < NE else f"s_add_u32 m0, s48, {2048*(sl-NE)}")
        if ENV('NOW'): return
        k.dma(v0, srd, so, 0); k.dma(v1, srd, so, 1024)
        k(f"s_add_u32 {so}, {so}, {inc}"); g.wrap(p, so, inc)
        g.q += [('W', s)]*2
    def loadF(g):
        s = g.nF; g.nF += 1; p = g.st[s]; k = g.k
        if 'preF' in p: p['preF'](); g.q = []
        f0, f1, srd, so = p['frag']; b = g.FR + 8*(s % g.DF)
        if ENV('NOF'): return
        fl = '' if ENV('NOSC') else 'sc1'
        k.ld(b, 4, f0, srd, so, 0, fl); k.ld(b+4, 4, f1, srd, so, 0, fl)
        k(f"s_add_u32 {so}, {so}, 2048"); g.wrap(p, so, 2048)
        g.q += [('F', s)]*2
    def wait(g, *tags):
        idx = [i for i, t in enumerate(g.q) if t in tags]
        if idx:
            n = len(g.q) - 1 - max(idx); assert n < 64
            g.k(f"s_waitcnt vmcnt({n})"); g.q = g.q[max(idx)+1:]
    def trs(g, s):
        p = g.st[s]; b = g.TR + 8*(s & 1); sl = s % g.DW
        v, o = (p['trv'], 2048*sl) if sl < NE else (p['trv']+2, 2048*(sl-NE))
        for h in range(2): g.k.tr(b+4*h, v+h, o); g.k.tr(b+4*h+2, v+h, o + p['roff'])
    def run(g, st0):
        k, n = g.k, len(g.st)
        while g.nF < LF or g.nW < LW:
            if g.nW < LW and (g.nW <= g.nF or g.nF >= LF): g.loadW()
            else: g.loadF()
        g.wait(('W', 0)); g.trs(0)
        for s in range(n):
            p = g.st[s]
            g.wait(('W', s+1), ('F', s))
            if s + 1 < n: g.trs(s+1); k("s_waitcnt lgkmcnt(4)")
            else: k("s_waitcnt lgkmcnt(0)")
            t = g.TR + 8*(s & 1); f = g.FR + 8*(s % g.DF)
            for a in range(2):
                for b in range(2):
                    A, B = (t+4*a, f+4*b) if p['w_is_a'] else (f+4*a, t+4*b)
                    k.mfma(p['acc']+16*(2*a+b), A, B, '0' if p['i'] == 0 else None)
            if g.nF < min(n, s+1+LF): g.loadF()
            if g.nW < min(n, s+1+LW): g.loadW()
            if 'post' in p: g.q += [('X', s)]*p['post']()
            if s % 16 == 15: k.stamp(st0 + s//16)
NLAB = [0]
def poll(k, voff, srd, soff, tag):
    NLAB[0] += 1; a, b = f"pl{NLAB[0]}", f"pd{NLAB[0]}"
    k("s_mov_b32 s43, 0x40000"); k.lab(a)
    k.ld(9, 1, voff, srd, soff, 0, 'sc1')
    k(f"s_waitcnt vmcnt(0)\nv_cmp_ne_u32 vcc, {tag}, v9\ns_sub_u32 s43, s43, 1"); k.br("s_cbranch_scc1", b)
    k.br("s_cbranch_vccz", b); k(f"s_mov_b64 exec, vcc\ns_sleep {ENV('SLP', 4)}"); k.br("s_branch", a); k.lab(b); k("s_mov_b64 exec, -1")
def publish(k, srd, soff, tag):
    k(f"s_waitcnt vmcnt(0)\ns_mov_b64 exec, 1\nv_mov_b32 v8, 0\nv_mov_b32 v9, {tag}")
    k.st(9, 1, 8, srd, soff, 0, 'sc1'); k("s_mov_b64 exec, -1")
def arrive(k, addr):
    k(f"s_waitcnt lgkmcnt(0)\ns_mov_b64 exec, 1\nv_mov_b32 v8, {addr}\nv_mov_b32 v9, 1\nds_add_u32 v8, v9\ns_mov_b64 exec, -1")
def lwait(k, addr, target):
    NLAB[0] += 1; a, b = f"ll{NLAB[0]}", f"ld{NLAB[0]}"
    k(f"v_mov_b32 v8, {addr}\ns_mov_b32 s43, 0x400000"); k.lab(a)
    k(f"ds_read_b32 v9, v8\ns_waitcnt lgkmcnt(0)\nv_cmp_gt_u32 vcc, {target}, v9\ns_sub_u32 s43, s43, 1"); k.br("s_cbranch_scc1", b)
    k.br("s_cbranch_vccz", b); k("s_sleep 1"); k.br("s_branch", a); k.lab(b)
def dma_offs(k, v0, v1, stride):
    k(f"""v_lshrrev_b32 v7, 3, v1
    v_and_b32 v8, 7, v1
    v_lshrrev_b32 v9, 2, v1
    v_and_b32 v9, 4, v9
    v_xor_b32 v8, v8, v9
    v_mul_u32_u24 v7, {stride}, v7
    v_lshl_add_u32 v{v0}, v8, 4, v7
    v_add_u32 v{v1}, {8*stride-1024}, v{v0}""")
def tr_offs(k, v, hfmul, sx):
    k(f"""v_mad_u32_u24 v7, v2, {hfmul}, v4
    v_lshl_add_u32 v7, v7, 7, v5
    v_lshrrev_b32 v8, 1, v4
    v_xor_b32 v8, {sx}, v8
    v_lshl_add_u32 v7, v8, 6, v7
    v_xor_b32 v8, 64, v7
    v_add_u32 v{v}, s40, v7
    v_add_u32 v{v+1}, s40, v8
    v_add_u32 v{v+2}, s48, v7
    v_add_u32 v{v+3}, s48, v8""")
def frag_offs(k, v0, v1, sx):
    k(f"v_lshlrev_b32 v7, 4, v1\nv_lshl_add_u32 v{v0}, {sx}, 10, v7\nv_xor_b32 v{v1}, 1024, v{v0}")
def red_write(k, acc, sw, base, wstride):
    k(f"s_mul_i32 s41, {sw}, {wstride}\ns_add_u32 s41, s41, {base}\nv_lshl_add_u32 v7, v1, 4, s41")
    for u in range(1, 4):
        for i in range(4): k(f"ds_write_b128 v7, {R(acc+16*u+4*i,4)} offset:{((u-1)*4+i)*1024}")
def red_read(k, acc, sw, base, wstride):
    for u in range(1, 4):
        k(f"s_xor_b32 s41, {sw}, {u}\ns_mul_i32 s41, s41, {wstride}\ns_add_u32 s41, s41, {base}\nv_lshl_add_u32 v7, v1, 4, s41")
        for i in range(4): k(f"ds_read_b128 {R(acc+16*u+4*i,4)}, v7 offset:{((u-1)*4+i)*1024}")
    for u in range(1, 4):
        k(f"s_waitcnt lgkmcnt({4*(3-u)})")
        for i in range(16): k(f"v_add_f32 v{acc+i}, v{acc+i}, v{acc+16*u+i}")
def get_nonce(k, srd):
    NLAB[0] += 1; a, b = f"nl{NLAB[0]}", f"nd{NLAB[0]}"
    k("s_mov_b32 s43, 0x40000\nv_mov_b32 v8, 0"); k.lab(a)
    k("v_readfirstlane_b32 s60, v255\ns_cmp_lg_u32 s60, 0"); k.br("s_cbranch_scc1", b)
    k("s_sub_u32 s43, s43, 1"); k.br("s_cbranch_scc1", b)
    k.ld(255, 1, 8, srd, 0, 0, 'sc1'); k("s_waitcnt vmcnt(0)"); k.br("s_branch", a); k.lab(b)
```

```python
from gen_f1 import *
PFS = ENV('PFS', 12)
def w2pref(k, W2, WO):
    k(f"""s_lshl_b32 s42, s45, 2
    s_add_u32 s42, s42, s5
    v_lshrrev_b32 v7, 3, v1
    v_lshl_add_u32 v7, s42, 4, v7
    v_lshlrev_b32 v7, 12, v7
    v_and_b32 v8, 7, v1
    v_lshl_add_u32 v7, v8, 7, v7
    v_add_u32 v8, 0x8000, v7
    s_lshr_b32 s43, s44, 1
    s_lshl_b32 s43, s43, 10
    s_sub_u32 s42, 127, s42
    v_lshrrev_b32 v9, 2, v1
    v_lshl_add_u32 v9, s42, 4, v9
    v_mul_u32_u24 v9, 896, v9
    v_lshl_add_u32 v9, v6, 7, v9
    s_and_b32 s42, s44, 1
    s_mul_i32 s42, s42, 384""")
    k.ld(254, 1, 7, W2, 's43'); k.ld(253, 1, 8, W2, 's43'); k.ld(252, 1, 9, WO, 's42')
    return 3
def gemms(k):
    W1, WS, B1, W2, WO, B2, OUT = 8, 12, 16, 20, 24, 28, 32
    X, GW, WK = 24, 28, 32
    A1, A2, TR, FR = 40, 104, 168, 184
    k.srds(dict(x=X, gw=GW, dbg=DBG, wk=WK, ws=WS, w1=W1, b1=B1, w2=W2))
    k(f"""s_load_dwordx2 s[62:63], s[0:1], {ARG['wv']}
    s_sub_u32 s5, s5, 4
    s_lshr_b32 s6, s5, 1
    s_and_b32 s7, s5, 1
    s_mul_i32 s40, s5, {2048*NE}
    s_add_u32 s40, s40, {LE}
    s_mul_i32 s48, s5, {2048*(DW-NE)}
    s_and_b32 s44, s2, 7
    s_lshr_b32 s45, s2, 3
    s_and_b32 s47, s44, 1
    s_add_u32 s36, s45, s47
    s_cmp_lt_u32 s36, 25
    s_cselect_b32 s46, 4, 0
    s_lshr_b32 s50, s44, 1
    s_mul_i32 s50, s50, 49
    s_mul_i32 s47, s47, 25
    s_add_u32 s50, s50, s47
    s_add_u32 s51, s45, s50
    s_mul_i32 s50, s51, 9363
    s_lshr_b32 s50, s50, 16
    s_mul_i32 s47, s50, 7
    s_sub_u32 s51, s51, s47
    s_and_b32 s47, s50, 3
    s_lshl_b32 s49, s5, 2
    s_add_u32 s49, s49, s47
    s_sub_u32 s47, 4, s47
    s_mul_i32 s38, s49, {128*3584}
    s_lshl_b32 s52, s50, 7
    s_add_u32 s38, s38, s52
    s_lshl_b32 s39, s51, 4
    s_add_u32 s39, s39, s49
    s_lshl_b32 s39, s39, 14
    s_add_u32 s39, s39, {WS_HT}
    s_lshl_b32 s37, s6, 6
    s_add_u32 s52, s52, s37
    s_lshl_b32 s53, s51, 2
    s_add_u32 s53, s53, s5
    s_lshl_b32 s53, s53, {5+FB}
    s_add_u32 s53, s53, {WS_FH}
    v_mov_b32 v8, 0
    s_waitcnt lgkmcnt(0)""")
    k.ld(255, 1, 8, DBG, 0, 0, 'sc1')
    A = A1
    p = dict(dma=(10,11,W1,'s38',16*3584), frag=(12,13,WS,'s39'), trv=14, roff=512, acc=A, w_is_a=True, wrap=(8,'s47',32))
    st = [dict(p, i=s) for s in range(32)]
    st[PFS]['post'] = lambda: w2pref(k, W2, WO)
    g = Gemm(k, st, DW, DF, FR, TR)
    def ringfill():
        k("s_cmp_eq_u32 s46, 0"); k.br("s_cbranch_scc1", "nofill")
        dma_offs(k, 10, 11, 3584)
        for i in range(NE): g.loadW()
        k("v_lshlrev_b32 v7, 3, v2")
        for i in range(4): k.ld(18+2*i, 2, 7, B1, 's52', 16*i)
        k.lab("nofill")
        return 2*NE + 4
    gprep(k, X, GW, WK, W1, WS, ringfill)
    k.srds(dict(wo=WO, b2=B2, out=OUT))
    k("s_waitcnt vmcnt(0) lgkmcnt(0)"); get_nonce(k, DBG)
    lwait(k, CX, 4); k(f"s_setprio {ENV('PRIO', 1)}")
    k("s_cmp_eq_u32 s46, 0"); k.br("s_cbranch_scc1", "pref")
    ringfill()
    frag_offs(k, 12, 13, 's7'); tr_offs(k, 14, 8, 's6')
    k(f"v_lshlrev_b32 v32, {FB}, v3")
    poll(k, 32, WS, 's53', TAG); k.stamp(12); g.q = []
    for i in range(LF): g.loadF()
    lwait(k, CQ1, 4)
    g.run(1)
    red_write(k, A, 's5', 0, 14336)
    arrive(k, CG1); lwait(k, CG1, 4)
    red_read(k, A, 's5', 0, 14336)
    arrive(k, CG2)
    c0 = -2*0.7978845608028654*1.4426950408889634; T = A + 16
    for i in range(8): k(f"v_lshlrev_b32 v{T+2*i}, 16, v{18+i}\nv_and_b32 v{T+1+2*i}, 0xffff0000, v{18+i}")
    k(f"v_mov_b32 v8, {c0!r}\nv_mov_b32 v9, {c0*0.044715!r}")
    for i in range(16): k(f"v_add_f32 v{A+i}, v{A+i}, v{T+i}")
    for i in range(16): k(f"v_mul_f32 v{T+i}, v{A+i}, v{A+i}")
    for i in range(16): k(f"v_fma_f32 v{T+i}, v{T+i}, v9, v8")
    for i in range(16): k(f"v_mul_f32 v{T+i}, v{T+i}, v{A+i}")
    for i in range(16): k(f"v_exp_f32 v{T+i}, v{T+i}")
    for i in range(16): k(f"v_add_f32 v{T+i}, 1.0, v{T+i}")
    for i in range(16): k(f"v_rcp_f32 v{T+i}, v{T+i}")
    for i in range(16): k(f"v_mul_f32 v{A+i}, v{A+i}, v{T+i}")
    for i in range(8): k.cvt(16+i, A+2*i, A+2*i+1)
    k(f"""s_mul_i32 s4, s51, 28
    s_add_u32 s4, s4, s50
    s_lshl_b32 s3, s4, 1
    s_add_u32 s3, s3, s6
    s_lshl_b32 s3, s3, 12
    s_add_u32 s3, s3, {WS_U}
    s_lshl_b32 s4, s4, 2
    s_add_u32 s4, s4, s5
    s_lshl_b32 s4, s4, {FB}
    s_add_u32 s4, s4, {WS_FU}""")
    k.st(16, 4, 12, WS, 's3', 0, 'sc1'); k.st(20, 4, 12, WS, 's3', 2048, 'sc1')
    publish(k, WS, 's4', TAG); k.stamp(3)
    k.br("s_branch", "g2")
    k.lab("pref")
    w2pref(k, W2, WO)
    k.lab("g2")
    k(f"""s_and_b32 s36, s44, 1
    s_lshl_b32 s36, s36, 2
    s_lshr_b32 s4, s45, 3
    s_add_u32 s4, s4, s36
    s_cmp_ge_u32 s4, 7"""); k.br("s_cbranch_scc1", "end")
    k(f"""s_and_b32 s47, s45, 3
    s_lshr_b32 s3, s44, 1
    s_lshl_b32 s3, s3, 3
    s_and_b32 s36, s45, 7
    s_add_u32 s3, s3, s36
    s_lshl_b32 s49, s5, 2
    s_add_u32 s49, s49, s47
    s_sub_u32 s47, 4, s47
    s_mul_i32 s50, s49, {112*4096}
    s_lshl_b32 s36, s3, 7
    s_add_u32 s50, s50, s36
    s_lshl_b32 s51, s4, 4
    s_add_u32 s51, s51, s49
    s_mul_i32 s51, s51, {7*2048}
    s_add_u32 s51, s51, {WS_U}
    s_mul_i32 s52, s5, {112*896}
    s_lshl_b32 s36, s4, 7
    s_add_u32 s52, s52, s36
    s_lshl_b32 s53, s3, 2
    s_add_u32 s53, s53, s5
    s_lshl_b32 s55, s53, {3+FB}
    s_add_u32 s55, s55, {WS_FO}
    s_mul_i32 s53, s53, {7*2048}
    s_add_u32 s53, s53, {WS_O}
    s_lshl_b32 s54, s4, 2
    s_add_u32 s54, s54, s5
    s_mul_i32 s54, s54, {28<<FB}
    s_mov_b32 s49, {WS_FU}""")
    dma_offs(k, 10, 11, 4096)
    p1 = dict(dma=(10,11,W2,'s50',65536), frag=(26,27,WS,'s51'), trv=14, roff=1024, acc=A1, w_is_a=False, wrap=(7,'s47',28))
    p2 = dict(dma=(18,19,WO,'s52',16*896), frag=(12,13,WS,'s53'), trv=20, roff=1024, acc=A2, w_is_a=True)
    st = [dict(p1, i=s) for s in range(28)] + [dict(p2, i=s) for s in range(7)]
    def pre0():
        k.stamp(4); poll(k, 32, WS, 's49', TAG); k.stamp(5)
        k.ld(29, 1, 34, WS, 's36', 0, 'sc1'); k.ld(30, 1, 35, WS, 's36', 0, 'sc1')
    st[0]['preF'] = pre0
    st[28]['preF'] = lambda: (k.stamp(8), poll(k, 33, WS, 's55', TAG), k.stamp(9))
    g = Gemm(k, st, DW, DF, FR, TR)
    for i in range(NE): g.loadW()
    tr_offs(k, 14, 4, 's7'); dma_offs(k, 18, 19, 896); tr_offs(k, 20, 4, 's6')
    frag_offs(k, 12, 13, 's7'); frag_offs(k, 26, 27, 's6')
    k(f"""s_lshl_b32 s36, s3, 1
    s_add_u32 s36, s36, s7
    v_lshl_add_u32 v28, s36, 5, v3
    v_lshlrev_b32 v34, 2, v28
    v_xor_b32 v35, 128, v34
    v_lshlrev_b32 v9, 1, v28
    s_lshl_b32 s36, s3, {2+FB}
    v_lshl_add_u32 v33, v6, {FB}, s36
    v_add_u32 v33, {WS_FH-WS_FU}, v33
    v_cmp_gt_u32 vcc, 28, v1
    v_lshl_add_u32 v32, v1, {FB}, s54
    s_mov_b32 s36, {WS_G}
    v_cndmask_b32 v32, v33, v32, vcc
    v_and_b32 v33, 7, v1
    v_lshlrev_b32 v33, {FB}, v33
    buffer_load_ushort v31, v9, {R(B2,4,'s')}, 0 offen""")
    lwait(k, CG2, 's46'); lwait(k, CQ1, 4)
    for i in range(DW-NE): g.loadW()
    if ENV('PRIO2', -1) >= 0: k(f"s_setprio {ENV('PRIO2')}")
    g.run(6)
    k("v_sub_f32 v29, 1.0, v29\nv_sub_f32 v30, 1.0, v30\nv_lshlrev_b32 v31, 16, v31")
    for i in range(16): k(f"v_add_f32 v{A1+i}, v{A1+i}, v31")
    for u in (1, 2, 3, 0):
        for i in range(16): k(f"v_fmac_f32 v{A2+16*u+i}, v{A1+16*u+i}, v{29+(u&1)}")
    k.stamp(10)
    red_write(k, A2, 's5', 0, 14336)
    arrive(k, CG3); lwait(k, CG3, 4)
    red_read(k, A2, 's5', 0, 14336)
    k(f"""v_mul_u32_u24 v7, 896, v28
    v_lshl_add_u32 v7, v2, 4, v7
    s_lshl_b32 s36, s4, 1
    s_add_u32 s36, s36, s6
    s_lshl_b32 s36, s36, 6""")
    for h in range(2):
        b = A2 + 8*h; t = 40 + 4*h
        k.cvt(t, b, b+1); k.cvt(t+1, b+2, b+3); k.cvt(t+2, b+4, b+5); k.cvt(t+3, b+6, b+7)
        k(f"v_permlane32_swap_b32 v{t}, v{t+2}\nv_permlane32_swap_b32 v{t+1}, v{t+3}")
        k.st(t, 4, 7, OUT, 's36', 32*h)
def gen_f():
    k = K("gated_mix__grouped_kv_mqa__mixer_token_mlp__prompt_kernel", 256)
    k("s_cmp_ge_u32 s2, 256"); k.br("s_cbranch_scc1", "end")
    k("v_lshrrev_b32 v1, 6, v0\ns_and_b32 s3, s2, 31\nv_readfirstlane_b32 s5, v1\ns_lshr_b32 s4, s2, 5")
    lane_fields(k, 0)
    k(f"v_and_b32 v7, 15, v1\nv_lshlrev_b32 v7, 2, v7\nv_add_u32 v7, {LC}, v7\nv_mov_b32 v8, 0\nds_write_b32 v7, v8\ns_waitcnt lgkmcnt(0)\ns_barrier")
    k("s_cmp_ge_u32 s5, 4"); k.br("s_cbranch_scc1", "g")
    X, WS, WQ = 8, 12, 16
    k.srds(dict(x=X, dbg=DBG, wq=WQ, ws=WS, w1=20))
    k("s_memrealtime s[60:61]\ns_or_b32 s6, s2, s5\ns_waitcnt lgkmcnt(0)\ns_cmp_eq_u32 s6, 0"); k.br("s_cbranch_scc0", "nononce")
    k("s_or_b32 s60, s60, 1"); publish(k, DBG, 0, 's60')
    k.lab("nononce")
    k.ld(255, 1, 8, DBG, 0, 0, 'sc1')
    k("s_setprio 2"); aprep(k, X, WQ, WS)
    attn(k, WS)
    k.lab("g")
    k("s_setprio 3")
    gemms(k)
    k.lab("end"); k("s_waitcnt vmcnt(0)\ns_endpgm")
    return k
if __name__ == "__main__":
    import sys
    from hazard import pad
    k = gen_f(); k.finish(0); k.L = pad(k.L)
    hdr = f"; @launch kernel={k.name} " if STAMP else "; @launch "
    t = hdr + f"grid=(256,1,1) block=(512,1,1) lds={LDS}\n" + '.amdgcn_target "amdgcn-amd-amdhsa--gfx950"\n' + k.text().replace(k.name + "_", "L_")
    open(sys.argv[1] if len(sys.argv) > 1 else "gated_mix__grouped_kv_mqa__mixer_token_mlp__prompt.s", "w").write(t)
```

```python
from gen_common import *
from gen_gemm import *
LX, LWQ, LHL, LE, LC, LDS = 0, 57344, 107520, 121856, 162816, 162944
LRED, LFLAG = LWQ, LC
CA, CG1, CG2, CG3, CX, CW, CQ1, CQ2, CH, CK, CH2, CA2 = [LC + 16 + 4*i for i in range(12)]
TAG, DW, DF, DBG = 's60', 12, 8, 56
Q, O, S, P, KV, MX = 16, 48, 112, 144, 160, 224
W1G = ENV('W1G', 1)
def proj(k, wstride, swap, acc=64):
    def rd(s):
        b = 16 + (s % 4) * 8
        k(f"ds_read_b128 {R(b,4)}, v{10+s%4} offset:{128*(s//4)}")
        k.tr(b+4, 14, 16*wstride*s); k.tr(b+6, 14, 16*wstride*s + 4*wstride)
    for s in range(3): rd(s)
    for s in range(28):
        if s + 3 < 28: rd(s+3)
        k(f"s_waitcnt lgkmcnt({3*min(3, 27-s)})")
        b = 16 + (s % 4) * 8
        a_, b_ = (b, b+4) if swap else (b+4, b)
        k.mfma(acc, a_, b_, '0' if s == 0 else None)
    k("s_nop 7\ns_nop 7")
def xbases(k, sth):
    k(f"""v_lshl_add_u32 v7, {sth}, 5, v3
    v_bfe_u32 v8, v7, 1, 3
    v_mul_u32_u24 v7, 896, v7""")
    for b in range(4):
        k(f"v_or_b32 v9, {2*b}, v2\nv_xor_b32 v9, v9, v8\nv_lshl_add_u32 v{10+b}, v9, 4, v7")
def aprep(k, X, WQ, WS):
    if ENV('APF', 1):
        k(f"""s_lshl_b32 s6, s4, 2
        s_add_u32 s6, s6, s5
        s_mul_i32 s6, s6, {14*128}
        s_mul_i32 s7, s3, 57344
        s_add_u32 s6, s6, s7
        v_min_u32 v7, 13, v1
        v_lshlrev_b32 v7, 7, v7
        s_lshr_b32 s7, s2, 3
        s_lshl_b32 s7, s7, 2
        s_add_u32 s7, s7, s5
        s_mul_i32 s7, s7, 25
        v_min_u32 v9, 24, v1
        v_add_u32 v9, s7, v9
        v_min_u32 v9, 3135, v9
        v_lshlrev_b32 v9, 7, v9""")
        k.ld(253, 1, 7, X, 's6'); k.ld(252, 1, 9, WQ, 0)
    k("""s_mul_i32 s6, s3, 57344
    s_mul_i32 s7, s5, 14336
    s_add_u32 s6, s6, s7
    s_mov_b32 m0, s7""")
    for i in range(14):
        k(f"""v_add_u32 v7, {64*i}, v1
        v_mul_u32_u24 v8, 1171, v7
        v_lshrrev_b32 v8, 17, v8
        v_xor_b32 v7, v7, v8
        v_lshlrev_b32 v7, 4, v7""")
        k.dma(7, X, 's6'); k("s_add_u32 m0, m0, 1024")
    if ENV('DLK', 1):
        k("s_cmp_eq_u32 s4, 7"); k.br("s_cbranch_scc0", "nodlk")
        k("s_waitcnt vmcnt(0)"); arrive(k, CH2); lwait(k, CK, 4); k.lab("nodlk")
    k(f"s_mul_i32 s7, s5, 12288\ns_add_u32 m0, s7, {LWQ}\ns_mul_i32 s6, s4, 112\ns_mul_i32 s7, s5, 768\nv_add_u32 v9, s7, v1")
    for i in range(13):
        k(f"""v_add_u32 v7, {64*i}, v9
        v_mul_u32_u24 v8, 9363, v7
        v_lshrrev_b32 v8, 16, v8
        v_mul_u32_u24 v8, 784, v8
        v_lshl_add_u32 v7, v7, 4, v8""")
        k.dma(7, WQ, 's6'); k("s_add_u32 m0, m0, 1024")
    e = 0 if W1G else 1
    if e: k("s_and_b32 s44, s2, 7\ns_lshr_b32 s45, s2, 3"); w1pref(k, 20)
    k("s_and_b32 s6, s5, 1\ns_lshr_b32 s7, s5, 1\ns_mul_i32 s7, s7, 56")
    xbases(k, 's6')
    k(f"""v_lshl_add_u32 v14, v2, 3, v4
    v_mul_u32_u24 v14, 112, v14
    v_add3_u32 v14, v14, v5, s7
    v_add_u32 v14, {LWQ}, v14
    s_waitcnt vmcnt({13+e})""")
    arrive(k, CX); k(f"s_waitcnt vmcnt({e})"); arrive(k, CW); k.stamp(3); lwait(k, CW, 4)
    proj(k, 112, False)
    arrive(k, CQ1)
    for i in range(16): k(f"v_mul_f32 v{64+i}, {28**-0.5*1.4426950408889634!r}, v{64+i}")
    k("v_cmp_gt_u32 vcc, 32, v1")
    for i in range(8): k.cvt(16+i, 64+2*i, 65+2*i)
    k(f"""v_cndmask_b32 v22, 0, v22, vcc
    v_cndmask_b32 v23, 0, v23, vcc
    v_lshlrev_b32 v10, 4, v1
    s_lshl_b32 s6, s5, 11
    v_add_u32 v7, s6, v10""")
    lwait(k, CQ1, 4)
    k(f"ds_write_b128 v7, v[16:19] offset:{LWQ}\nds_write_b128 v7, v[20:23] offset:{LWQ+1024}")
    arrive(k, CQ2); k.stamp(4)
    get_nonce(k, DBG)
    k(f"""s_lshl_b32 s6, s5, {5+FB}
    v_lshl_add_u32 v12, v3, {FB}, s6
    v_add_u32 v12, {WS_FK-WS_FU}, v12
    s_lshl_b32 s6, s3, {2+FB}
    v_lshl_add_u32 v13, v6, {FB}, s6
    v_add_u32 v13, {WS_FH-WS_FU}, v13
    v_mov_b32 v14, {WS_FK-WS_FU}
    v_cmp_gt_u32 vcc, 48, v1
    v_cndmask_b32 v13, v14, v13, vcc
    v_cmp_gt_u32 vcc, 32, v1
    v_cndmask_b32 v12, v13, v12, vcc
    s_mov_b32 s6, {WS_FU}""")
    lwait(k, CQ2, 4)
    for u in range(1, 4):
        k(f"v_xor_b32 v8, {2048*u}, v7\nds_read_b128 {R(Q+8*u,4)}, v8 offset:{LWQ}\nds_read_b128 {R(Q+8*u+4,4)}, v8 offset:{LWQ+1024}")
    poll(k, 12, WS, 's6', TAG); k.stamp(5)
def attn(k, WS):
    k(f"""s_lshl_b32 s31, s5, 16
    s_add_u32 s31, s31, {WS_KV}
    s_lshl_b32 s7, s3, 1
    s_and_b32 s34, s5, 1
    s_add_u32 s7, s7, s34
    v_lshl_add_u32 v7, s7, 5, v3
    v_lshlrev_b32 v7, 2, v7
    s_mov_b32 s34, {WS_G}
    s_mov_b32 s36, 1
    s_mov_b32 s37, 0
    s_waitcnt lgkmcnt(0)""")
    k.ld(11, 1, 7, WS, 's34', 0, 'sc1')
    if ENV('NOA'): k("s_waitcnt vmcnt(0)"); k.br("s_branch", "fin")
    k.lab("pass")
    k(f"s_mov_b32 s30, {WS_KV}\ns_mov_b32 s35, s36")
    for u in range(4): k(f"v_mov_b32 v{MX+u}, 0xff800000")
    k.lab("mx")
    k.ld(MX+8, 4, 10, WS, 's30', 0, 'sc1'); k.ld(MX+12, 4, 10, WS, 's30', 1024, 'sc1')
    k("s_add_u32 s30, s30, 4096\ns_sub_u32 s35, s35, 1\ns_cmp_lg_u32 s35, 0"); k.br("s_cbranch_scc1", "nopre")
    k("s_mov_b32 s30, s31")
    for t in range(3):
        for i in range(4): k.ld(KV+16*t+4*i, 4, 10, WS, 's30', 1024*i, 'sc1')
        k("s_add_u32 s30, s30, 4096")
    k("s_waitcnt vmcnt(12)"); k.br("s_branch", "mx2")
    k.lab("nopre"); k("s_waitcnt vmcnt(0)")
    k.lab("mx2")
    arrive(k, CA2)
    k.stamp(1)
    for u in range(4):
        k.mfma(O+16*u, MX+8, Q+8*u, '0'); k.mfma(O+16*u, MX+12, Q+8*u+4)
    for u in range(4):
        for i in range(8): k(f"v_max3_f32 v{MX+u}, v{O+16*u+2*i}, v{O+16*u+2*i+1}, v{MX+u}")
    k("s_cmp_lg_u32 s35, 0"); k.br("s_cbranch_scc1", "mx")
    k("v_cmp_gt_u32 vcc, 32, v1")
    for u in range(4): k(f"v_mov_b32 v{MX+4+u}, v{MX+u}")
    for u in range(4): k(f"v_permlane32_swap_b32 v{MX+u}, v{MX+4+u}")
    for u in range(4):
        m, t = MX+u, MX+4+u
        k(f"""v_max_f32 v{m}, v{m}, v{t}
        v_xor_b32 v{m}, 0x80000000, v{m}
        v_and_b32 v{t}, 0xffff0000, v{m}
        v_sub_f32 v{m}, v{m}, v{t}
        v_lshrrev_b32 v{t}, 16, v{t}
        v_and_b32 v8, 0xffff0000, v{m}
        v_sub_f32 v{m}, v{m}, v8
        v_or_b32 v{t}, v{t}, v8
        v_lshrrev_b32 v{m}, 16, v{m}
        v_cndmask_b32 v{Q+8*u+6}, v{t}, v{Q+8*u+6}, vcc
        v_cndmask_b32 v{Q+8*u+7}, v{m}, v{Q+8*u+7}, vcc""")
    for i in range(64): k(f"v_mov_b32 v{O+i}, 0")
    for i in range(4): k(f"v_mov_b32 v{P+12+i}, 0\nv_mov_b32 v{KV+60+i}, 0")
    k("s_waitcnt vmcnt(8)\ns_mov_b32 s35, 4")
    k.mfma(S, KV, Q, '0'); k.mfma(S, KV+4, Q+4)
    k("s_nop 11")
    k.stamp(2)
    k.lab("loop")
    for n in range(16):
        t, u = n >> 2, n & 3
        s, p = S + 16*(n & 1), P + 8*(n & 1)
        n1 = (n+1) & 15; s1, k1, q1 = S + 16*(n1 & 1), KV + 16*(n1 >> 2), Q + 8*(n1 & 3)
        n0 = (n-1) & 15
        ex = lambda a, b: [k(f"v_exp_f32 v{s+i}, v{s+i}") for i in range(a, b)]
        cv = lambda a, b: [k.cvt(p+i, s+2*i, s+2*i+1) for i in range(a, b)]
        if u == 3: k("s_waitcnt vmcnt(8)")
        k.mfma(s1, k1, q1, '0')
        ex(0, 5); cv(0, 2)
        k.mfma(O+16*(n0 & 3), KV+16*(n0 >> 2)+12, P+8*(n0 & 1)+4)
        if u == 0:
            k("s_setprio 3")
            for i in range(4): k.ld(KV+16*((t+3) & 3)+4*i, 4, 10, WS, 's30', 1024*i, 'sc1')
            k(f"s_setprio {ENV('PRIOA')}")
            k("s_add_u32 s30, s30, 4096")
        ex(5, 9); cv(2, 4)
        k.mfma(s1, k1+4, q1+4)
        ex(9, 13); cv(4, 6)
        k.mfma(O+16*u, KV+16*t+8, p)
        ex(13, 16); cv(6, 8)
    k("s_sub_u32 s35, s35, 1\ns_cmp_lg_u32 s35, 0"); k.br("s_cbranch_scc1", "loop")
    k.mfma(O+48, KV+60, P+12)
    k(f"""v_mov_b32 v8, 0x5f800000
    v_cmp_nlt_f32 s[38:39], v{O+12}, v8
    v_cmp_nlt_f32 vcc, v{O+28}, v8
    s_or_b32 s39, s39, vcc_hi
    v_cmp_nlt_f32 vcc, v{O+44}, v8
    s_or_b32 s39, s39, vcc_hi
    v_cmp_nlt_f32 vcc, v{O+60}, v8
    s_or_b32 s39, s39, vcc_hi
    s_lshl_b32 s38, s5, 2
    v_mov_b32 v8, s39
    v_mov_b32 v9, s38
    v_add_u32 v9, {LFLAG}, v9
    ds_write_b32 v9, v8""")
    k("s_setprio 3"); k.stamp(8); red_write(k, O, 's5', LRED, 12288)
    arrive(k, CA); k("s_add_u32 s37, s37, 4"); lwait(k, CA, 's37'); k.stamp(9)
    k(f"""v_mov_b32 v9, {LFLAG}
    ds_read_b128 v[12:15], v9""")
    red_read(k, O, 's5', LRED, 12288)
    k("v_or_b32 v12, v12, v13\nv_or3_b32 v12, v12, v14, v15\nv_readfirstlane_b32 s38, v12\ns_cmp_eq_u32 s38, 0")
    k.br("s_cbranch_scc1", "fin")
    k("s_cmp_eq_u32 s36, 1"); k.br("s_cbranch_scc0", "fin")
    k("s_mov_b32 s36, 64\nv_cmp_gt_u32 vcc, 32, v1")
    for u in range(4): k(f"v_cndmask_b32 v{Q+8*u+6}, 0, v{Q+8*u+6}, vcc\nv_cndmask_b32 v{Q+8*u+7}, 0, v{Q+8*u+7}, vcc")
    arrive(k, CA); k("s_add_u32 s37, s37, 4"); lwait(k, CA, 's37'); k("s_waitcnt vmcnt(0)"); k.br("s_branch", "pass")
    k.lab("fin")
    k(f"""v_mov_b32 v8, v{O+12}
    v_mov_b32 v9, v{O+12}
    s_lshl_b32 s6, s4, 1
    s_lshr_b32 s7, s5, 1
    v_permlane32_swap_b32 v8, v9
    s_add_u32 s6, s6, s7
    s_mul_i32 s6, s6, 7
    v_rcp_f32 v9, v9
    s_mul_i32 s7, s3, 56
    s_and_b32 s34, s5, 1
    v_mul_f32 v9, v9, v11
    s_add_u32 s7, s7, s34
    s_lshl_b32 s7, s7, 10
    s_add_u32 s7, s7, {WS_O}""")
    for i in range(16): k(f"v_mul_f32 v{O+i}, v{O+i}, v9")
    for i in range(8): k.cvt(P+i, O+2*i, O+2*i+1)
    for i in range(4):
        k(f"""v_add3_u32 v8, s6, v2, {2*i}
        v_lshrrev_b32 v12, 2, v8
        v_lshlrev_b32 v12, 11, v12
        v_and_b32 v13, 1, v8
        v_lshl_add_u32 v12, v13, 9, v12
        v_and_b32 v13, 2, v8
        v_lshl_add_u32 v12, v13, 2, v12
        v_lshl_add_u32 v12, v3, 4, v12""")
        if i == 3: k("s_mov_b32 exec_hi, 0")
        k.st(P+2*i, 2, 12, WS, 's7', 0, 'sc1')
    k(f"s_lshl_b32 s6, s3, 3\ns_add_u32 s6, s6, s4\ns_lshl_b32 s6, s6, 2\ns_add_u32 s6, s6, s5\ns_lshl_b32 s6, s6, {FB}\ns_add_u32 s6, s6, {WS_FO}")
    publish(k, WS, 's6', TAG)
    k("s_endpgm")
def gprep(k, X, GW, WK, W1, WS, ringfill):
    k("s_cmp_eq_u32 s4, 7"); k.br("s_cbranch_scc1", "kv")
    k("s_cmp_ge_u32 s4, 4"); k.br("s_cbranch_scc0", "ln")
    def w1p(lab):
        w1pref(k, W1)
        k("s_cmp_lt_u32 s45, 24"); k.br("s_cbranch_scc1", lab)
        k(f"s_add_u32 s42, s42, {16*16*3584}"); k.ld(253, 1, 7, W1, 's42')
    if W1G == 3: w1p("w1q"); k.lab("w1q")
    k("s_waitcnt vmcnt(0)"); get_nonce(k, DBG); k.br("s_branch", "w1p"); k.lab("ln")
    k(f"""s_lshl_b32 s36, s3, 2
    s_add_u32 s36, s36, s4
    s_lshl_b32 s37, s36, 2
    s_add_u32 s37, s37, s5
    v_lshl_add_u32 v50, s37, 2, v2
    v_lshlrev_b32 v7, 4, v3
    v_mov_b32 v9, 0x7ff00000
    v_cmp_gt_u32 vcc, 28, v3
    v_mul_u32_u24 v8, 896, v50
    v_cndmask_b32 v7, v9, v7, vcc
    v_add_u32 v8, v8, v7""")
    for i, o in enumerate((0, 448, 1792, 2240)): k.ld(52+4*i, 4, 8, X, 0, o)
    k.ld(68, 4, 7, GW); k.ld(72, 4, 7, GW, 0, 448)
    if W1G == 3: w1pref(k, W1)
    k(f"s_waitcnt vmcnt({int(W1G == 3)})")
    XR, GR = 80, 112
    for i in range(24): k(f"v_lshlrev_b32 v{XR+2*i}, 16, v{52+i}\nv_and_b32 v{XR+2*i+1}, 0xffff0000, v{52+i}")
    for r in range(2): k(f"v_mov_b32 v{40+r}, v{XR+16*r}\nv_mul_f32 v{42+r}, v{XR+16*r}, v{GR}")
    for i in range(1, 16):
        for r in range(2): k(f"v_add_f32 v{40+r}, v{40+r}, v{XR+16*r+i}\nv_fmac_f32 v{42+r}, v{XR+16*r+i}, v{GR+i}")
    def red(regs):
        for m in ("quad_perm:[1,0,3,2]", "quad_perm:[2,3,0,1]", "row_half_mirror", "row_mirror"):
            for r in regs: k(f"v_add_f32_dpp v{r}, v{r}, v{r} {m} row_mask:0xf bank_mask:0xf")
        for r in regs: k(f"ds_swizzle_b32 v{r+6}, v{r} offset:0x401F")
        k("s_waitcnt lgkmcnt(0)")
        for r in regs: k(f"v_add_f32 v{r}, v{r}, v{r+6}")
    red([40, 41, 42, 43])
    for r in range(2): k(f"v_mul_f32 v{40+r}, {1/448!r}, v{40+r}\nv_mul_f32 v{42+r}, -1.4426950408889634, v{42+r}\nv_mov_b32 v{128+r}, 0\nv_exp_f32 v{42+r}, v{42+r}")
    for i in range(16):
        for r in range(2): k(f"v_sub_f32 v{XR+16*r+i}, v{XR+16*r+i}, v{40+r}")
        for r in range(2): k(f"v_fmac_f32 v{128+r}, v{XR+16*r+i}, v{XR+16*r+i}")
    for r in range(2): k(f"v_cndmask_b32 v{128+r}, 0, v{128+r}, vcc\nv_add_f32 v{42+r}, 1.0, v{42+r}\nv_rcp_f32 v{42+r}, v{42+r}")
    red([128, 129])
    for r in range(2): k(f"v_mov_b32 v{40+r}, 1e-5\nv_fmac_f32 v{40+r}, {1/448!r}, v{128+r}\nv_rsq_f32 v{40+r}, v{40+r}")
    k(f"""v_and_b32 v9, 15, v50
    v_mul_u32_u24 v8, 896, v9
    v_lshl_add_u32 v8, v3, 4, v8
    v_add_u32 v8, {LHL}, v8
    v_lshlrev_b32 v9, 2, v9
    v_add_u32 v9, {LC+64}, v9
    ds_write_b32 v9, v42
    ds_write_b32 v9, v43 offset:8""")
    for i in range(32): k(f"v_mul_f32 v{XR+i}, v{XR+i}, v{40+i//16}")
    for i in range(16): k.cvt(52+i, XR+2*i, XR+2*i+1)
    k("s_mov_b64 exec, vcc")
    for i, o in enumerate((0, 448, 1792, 2240)): k(f"ds_write_b128 v8, {R(52+4*i,4)} offset:{o}")
    arrive(k, CH)
    k(f"""v_lshl_add_u32 v7, v2, 3, v4
    v_mul_u32_u24 v7, 896, v7
    s_lshl_b32 s37, s5, 7
    v_add3_u32 v7, v7, v5, s37
    v_add_u32 v7, {LHL}, v7
    s_add_u32 s49, s5, 4
    s_min_u32 s49, s49, 6
    s_sub_u32 s49, s49, s5
    s_lshl_b32 s42, s49, 7
    v_add_u32 v40, s42, v7
    s_add_u32 s37, s37, s36
    v_and_b32 v41, 15, v1
    v_lshlrev_b32 v41, 2, v41
    v_add_u32 v42, {LC+64}, v41
    v_lshlrev_b32 v43, 4, v1""")
    lwait(k, CH, 4)
    for i in range(4): k.tr(52+4*i, (7, 40)[i//2], 64*(i&1)); k.tr(54+4*i, (7, 40)[i//2], 64*(i&1) + 3584)
    k(f"""ds_read_b32 v42, v42
    s_lshl_b32 s42, s37, 11
    s_add_u32 s42, s42, {WS_HT}
    s_lshl_b32 s43, s49, 18
    s_add_u32 s43, s43, s42
    s_lshl_b32 s36, s36, 6
    s_add_u32 s36, s36, {WS_G}
    s_waitcnt lgkmcnt(0)""")
    for i in range(4): k.st(52+4*i, 4, 43, WS, ('s42', 's43')[i//2], 1024*(i&1), 'sc1')
    k.st(42, 1, 41, WS, 's36', 0, 'sc1')
    get_nonce(k, DBG)
    k(f"""s_lshl_b32 s37, s37, {FB}
    s_add_u32 s37, s37, {WS_FH}
    s_lshl_b32 s49, s49, {7+FB}
    v_mul_u32_u24 v8, s49, v1
    v_mov_b32 v9, s60
    s_waitcnt vmcnt(0)
    s_mov_b64 exec, 3""")
    k.st(9, 1, 8, WS, 's37', 0, 'sc1'); k("s_mov_b64 exec, -1"); k.stamp(11)
    k.lab("w1p")
    if W1G == 1: lwait(k, CX, 4); w1p("gp_done")
    k.br("s_branch", "gp_done")
    k.lab("kv")
    k(f"""s_cmp_eq_u32 s6, 1
    s_cselect_b32 s{WK}, s62, s{WK}
    s_cselect_b32 s{WK+1}, s63, s{WK+1}
    s_mul_i32 s36, s6, 26624
    s_add_u32 s36, s36, {LHL}
    s_lshl_b32 s37, s7, 10
    s_add_u32 m0, s36, s37
    v_lshl_add_u32 v7, v1, 4, s37""")
    for i in range(13): k.dma(7, WK); k("s_add_u32 m0, m0, 2048\nv_add_u32 v7, 2048, v7")
    xbases(k, 's7')
    k(f"""v_lshl_add_u32 v14, v2, 3, v4
    v_mul_u32_u24 v14, 56, v14
    v_add3_u32 v14, v14, v5, s36
    s_lshl_b32 s36, s3, 1
    s_add_u32 s36, s36, s7
    s_lshl_b32 s36, s36, 1
    s_add_u32 s36, s36, s6
    s_lshl_b32 s37, s36, {FB}
    s_add_u32 s37, s37, {WS_FK}
    s_lshl_b32 s36, s36, 11
    s_add_u32 s36, s36, {WS_KV}
    s_waitcnt vmcnt(0)""")
    arrive(k, CK); lwait(k, CK, 4); lwait(k, CH2 if ENV('DLK', 1) else CX, 4)
    k("s_cmp_eq_u32 s6, 1"); k.br("s_cbranch_scc1", "vv")
    proj(k, 56, False)
    k("v_cmp_gt_u32 vcc, 32, v1\nv_mov_b32 v8, 0x3f803f80\nv_mov_b32 v9, 0x3f80")
    for i in range(8): k.cvt(16+i, 64+2*i, 65+2*i)
    k("v_cndmask_b32 v22, v8, v22, vcc\nv_cndmask_b32 v23, v9, v23, vcc")
    k.br("s_branch", "st2")
    k.lab("vv")
    proj(k, 56, True)
    k("""v_cmp_eq_u32 vcc, 28, v3
    v_mov_b32 v8, 0x3f803f80
    v_cndmask_b32 v8, 0, v8, vcc
    v_cmp_gt_u32 vcc, 28, v3""")
    for i in range(8): k.cvt(16+i, 64+2*i, 65+2*i)
    for i in range(8): k(f"v_cndmask_b32 v{16+i}, v8, v{16+i}, vcc")
    k.lab("st2")
    arrive(k, CK)
    k("v_lshlrev_b32 v7, 4, v1")
    k.st(16, 4, 7, WS, 's36', 0, 'sc1'); k.st(20, 4, 7, WS, 's36', 1024, 'sc1')
    get_nonce(k, DBG)
    publish(k, WS, 's37', TAG); k.stamp(11)
    lwait(k, CK, 8)
    k.lab("gp_done")
def w1pref(k, W1):
    k(f"""s_mul_i32 s42, s44, 7
    s_lshr_b32 s42, s42, 1
    s_lshl_b32 s42, s42, 7
    s_lshl_b32 s43, s45, 2
    s_add_u32 s43, s43, s5
    s_mul_i32 s43, s43, {16*3584}
    s_add_u32 s42, s42, s43
    v_lshrrev_b32 v7, 2, v1
    v_mul_u32_u24 v7, 3584, v7
    v_lshl_add_u32 v7, v6, 7, v7""")
    k.ld(254, 1, 7, W1, 's42')
```

```python
from gen_common import *
NE = 5
LW, LF = ENV('LW', 5), ENV('LF', 4)
class Gemm:
    def __init__(g, k, steps, DW, DF, FR, TR, LW=LW, LF=LF):
        g.LW, g.LF = LW, LF
        g.k, g.st, g.DW, g.DF, g.FR, g.TR = k, steps, DW, DF, FR, TR
        g.q, g.nW, g.nF = [], 0, 0
    def wrap(g, p, so, inc):
        if 'wrap' in p and (p['i'] + 1) % p['wrap'][0] == 0 and p['i'] + 1 < p['wrap'][2]:
            per, sr, ln = p['wrap']
            g.k(f"s_cmp_eq_u32 {sr}, {(p['i']+1)//per}\ns_cselect_b32 s42, {ln*inc}, 0\ns_sub_u32 {so}, {so}, s42")
    def loadW(g):
        s = g.nW; g.nW += 1; p = g.st[s]; k = g.k
        v0, v1, srd, so, inc = p['dma']
        sl = s % g.DW
        k(f"s_add_u32 m0, s40, {2048*sl}" if sl < NE else f"s_add_u32 m0, s48, {2048*(sl-NE)}")
        if ENV('NOW'): return
        k.dma(v0, srd, so, 0); k.dma(v1, srd, so, 1024)
        k(f"s_add_u32 {so}, {so}, {inc}"); g.wrap(p, so, inc)
        g.q += [('W', s)]*2
    def loadF(g):
        s = g.nF; g.nF += 1; p = g.st[s]; k = g.k
        if 'preF' in p and not p['preF'](): g.q = []
        f0, f1, srd, so = p['frag']; b = g.FR + 8*(s % g.DF)
        if ENV('NOF'): return
        fl = '' if ENV('NOSC') else 'sc1'
        k.ld(b, 4, f0, srd, so, 0, fl); k.ld(b+4, 4, f1, srd, so, 0, fl)
        k(f"s_add_u32 {so}, {so}, 2048"); g.wrap(p, so, 2048)
        g.q += [('F', s)]*2
    def wait(g, *tags):
        idx = [i for i, t in enumerate(g.q) if t in tags]
        if idx:
            n = len(g.q) - 1 - max(idx); assert n < 64
            g.k(f"s_waitcnt vmcnt({n})"); g.q = g.q[max(idx)+1:]
    def trs(g, s):
        p = g.st[s]; b = g.TR + 8*(s & 1); sl = s % g.DW
        v, o = (p['trv'], 2048*sl) if sl < NE else (p['trv']+2, 2048*(sl-NE))
        for h in range(2): g.k.tr(b+4*h, v+h, o); g.k.tr(b+4*h+2, v+h, o + p['roff'])
    def run(g, st0):
        k, n, LW, LF = g.k, len(g.st), g.LW, g.LF
        while g.nF < LF or g.nW < LW:
            if g.nW < LW and (g.nW <= g.nF or g.nF >= LF): g.loadW()
            else: g.loadF()
        g.wait(('W', 0)); g.trs(0)
        for s in range(n):
            p = g.st[s]
            g.wait(('W', s+1), ('F', s))
            if s + 1 < n: g.trs(s+1); k("s_waitcnt lgkmcnt(4)")
            else: k("s_waitcnt lgkmcnt(0)")
            t = g.TR + 8*(s & 1); f = g.FR + 8*(s % g.DF)
            n0 = len(k.L)
            for a in range(2):
                for b in range(2):
                    A, B = (t+4*a, f+4*b) if p['w_is_a'] else (f+4*a, t+4*b)
                    k.mfma(p['acc']+16*(2*a+b), A, B, '0' if p['i'] == 0 else None)
            mix = ENV('MIX', 1) and not (g.nF < n and 'preF' in g.st[g.nF])
            if g.nF < min(n, s+1+LF): g.loadF()
            if g.nW < min(n, s+1+LW): g.loadW()
            if mix:
                mf, rest = k.L[n0:n0+4], k.L[n0+4:]; out = [mf.pop(0)]
                for l in rest:
                    out.append(l)
                    if 'buffer_load' in l and mf: out.append(mf.pop(0))
                k.L[n0:] = out + mf
            if 'post' in p: g.q += [('X', s)]*p['post']()
            if s % 16 == 15: k.stamp(st0 + s//16)
NLAB = [0]
def poll(k, voff, srd, soff, tag):
    NLAB[0] += 1; a, b = f"pl{NLAB[0]}", f"pd{NLAB[0]}"
    k("s_mov_b32 s43, 0x40000"); k.lab(a)
    k.ld(9, 1, voff, srd, soff, 0, 'sc1')
    k(f"s_waitcnt vmcnt(0)\nv_cmp_ne_u32 vcc, {tag}, v9\ns_sub_u32 s43, s43, 1"); k.br("s_cbranch_scc1", b)
    k.br("s_cbranch_vccz", b); k(f"s_mov_b64 exec, vcc\ns_sleep {ENV('SLP', 4)}"); k.br("s_branch", a); k.lab(b); k("s_mov_b64 exec, -1")
def publish(k, srd, soff, tag):
    k(f"s_waitcnt vmcnt(0)\ns_mov_b64 exec, 1\nv_mov_b32 v8, 0\nv_mov_b32 v9, {tag}")
    k.st(9, 1, 8, srd, soff, 0, 'sc1'); k("s_mov_b64 exec, -1")
def arrive(k, addr):
    k(f"s_waitcnt lgkmcnt(0)\ns_mov_b64 exec, 1\nv_mov_b32 v8, {addr}\nv_mov_b32 v9, 1\nds_add_u32 v8, v9\ns_mov_b64 exec, -1")
def lwait(k, addr, target):
    NLAB[0] += 1; a, b = f"ll{NLAB[0]}", f"ld{NLAB[0]}"
    k(f"v_mov_b32 v8, {addr}\ns_mov_b32 s43, 0x400000"); k.lab(a)
    k(f"ds_read_b32 v9, v8\ns_waitcnt lgkmcnt(0)\nv_cmp_gt_u32 vcc, {target}, v9\ns_sub_u32 s43, s43, 1"); k.br("s_cbranch_scc1", b)
    k.br("s_cbranch_vccz", b); k("s_sleep 1"); k.br("s_branch", a); k.lab(b)
def dma_offs(k, v0, v1, stride):
    k(f"""v_lshrrev_b32 v7, 3, v1
    v_and_b32 v8, 7, v1
    v_lshrrev_b32 v9, 2, v1
    v_and_b32 v9, 4, v9
    v_xor_b32 v8, v8, v9
    v_mul_u32_u24 v7, {stride}, v7
    v_lshl_add_u32 v{v0}, v8, 4, v7
    v_add_u32 v{v1}, {8*stride-1024}, v{v0}""")
def tr_offs(k, v, hfmul, sx):
    k(f"""v_mad_u32_u24 v7, v2, {hfmul}, v4
    v_lshl_add_u32 v7, v7, 7, v5
    v_lshrrev_b32 v8, 1, v4
    v_xor_b32 v8, {sx}, v8
    v_lshl_add_u32 v7, v8, 6, v7
    v_xor_b32 v8, 64, v7
    v_add_u32 v{v}, s40, v7
    v_add_u32 v{v+1}, s40, v8
    v_add_u32 v{v+2}, s48, v7
    v_add_u32 v{v+3}, s48, v8""")
def frag_offs(k, v0, v1, sx):
    k(f"v_lshlrev_b32 v7, 4, v1\nv_lshl_add_u32 v{v0}, {sx}, 10, v7\nv_xor_b32 v{v1}, 1024, v{v0}")
def red_write(k, acc, sw, base, wstride):
    k(f"s_mul_i32 s41, {sw}, {wstride}\ns_add_u32 s41, s41, {base}\nv_lshl_add_u32 v7, v1, 4, s41")
    for u in range(1, 4):
        for i in range(4): k(f"ds_write_b128 v7, {R(acc+16*u+4*i,4)} offset:{((u-1)*4+i)*1024}")
def red_read(k, acc, sw, base, wstride):
    for u in range(1, 4):
        k(f"s_xor_b32 s41, {sw}, {u}\ns_mul_i32 s41, s41, {wstride}\ns_add_u32 s41, s41, {base}\nv_lshl_add_u32 v7, v1, 4, s41")
        for i in range(4): k(f"ds_read_b128 {R(acc+16*u+4*i,4)}, v7 offset:{((u-1)*4+i)*1024}")
    for u in range(1, 4):
        k(f"s_waitcnt lgkmcnt({4*(3-u)})")
        for i in range(16): k(f"v_add_f32 v{acc+i}, v{acc+i}, v{acc+16*u+i}")
def get_nonce(k, srd):
    NLAB[0] += 1; a, b = f"nl{NLAB[0]}", f"nd{NLAB[0]}"
    k("s_mov_b32 s43, 0x40000\nv_mov_b32 v8, 0"); k.lab(a)
    k("v_readfirstlane_b32 s60, v255\ns_cmp_lg_u32 s60, 0"); k.br("s_cbranch_scc1", b)
    k("s_sub_u32 s43, s43, 1"); k.br("s_cbranch_scc1", b)
    k.ld(255, 1, 8, srd, 0, 0, 'sc1'); k("s_waitcnt vmcnt(0)"); k.br("s_branch", a); k.lab(b)
```

```python
from gen_f1 import *
PFS = ENV('PFS', 12)
def w2pref(k, W2, WO):
    k(f"""s_lshl_b32 s42, s45, 2
    s_add_u32 s42, s42, s5
    v_lshrrev_b32 v7, 3, v1
    v_lshl_add_u32 v7, s42, 4, v7
    v_lshlrev_b32 v7, 12, v7
    v_and_b32 v8, 7, v1
    v_lshl_add_u32 v7, v8, 7, v7
    v_add_u32 v8, 0x8000, v7
    s_lshr_b32 s43, s44, 1
    s_lshl_b32 s43, s43, 10
    s_sub_u32 s42, 127, s42
    v_lshrrev_b32 v9, 2, v1
    v_lshl_add_u32 v9, s42, 4, v9
    v_mul_u32_u24 v9, 896, v9
    v_lshl_add_u32 v9, v6, 7, v9
    s_and_b32 s42, s44, 1
    s_mul_i32 s42, s42, 384""")
    k.ld(254, 1, 7, W2, 's43'); k.ld(253, 1, 8, W2, 's43'); k.ld(252, 1, 9, WO, 's42')
    return 3
def w2pref2(k, W2, WO, WS):
    k("s_cmp_lt_u32 s45, 25"); k.br("s_cbranch_scc1", "g2s")
    k("s_setprio 0"); lwait(k, CA2, 4)
    k(f"""s_sub_u32 s42, s45, 25
    s_lshl_b32 s42, s42, 2
    s_add_u32 s42, s42, s5
    v_lshrrev_b32 v7, 3, v1
    v_lshl_add_u32 v7, s42, 3, v7
    v_lshlrev_b32 v7, 12, v7
    v_and_b32 v8, 7, v1
    v_lshl_add_u32 v7, v8, 7, v7
    s_lshr_b32 s43, s44, 1
    s_lshl_b32 s43, s43, 10
    v_lshrrev_b32 v9, 2, v1
    v_lshl_add_u32 v9, s42, 4, v9
    v_mul_u32_u24 v9, 896, v9
    v_lshl_add_u32 v9, v6, 7, v9
    s_and_b32 s42, s44, 1
    s_mul_i32 s42, s42, 384""")
    for i in range(8):
        k.ld(254-i, 1, 7, W2, 's43'); k(f"s_add_u32 s43, s43, {224*4096}\ns_waitcnt vmcnt({ENV('PFN', 2)-1})")
    k.ld(246, 1, 9, WO, 's42')
def gemms(k):
    W1, WS, B1, W2, WO, B2, OUT = 8, 12, 16, 20, 24, 28, 32
    X, GW, WK = 24, 28, 32
    A1, A2, TR, FR = 40, 104, 168, 184
    k.srds(dict(x=X, gw=GW, dbg=DBG, wk=WK, ws=WS, w1=W1, b1=B1, w2=W2))
    k(f"""s_load_dwordx2 s[62:63], s[0:1], {ARG['wv']}
    s_sub_u32 s5, s5, 4
    s_lshr_b32 s6, s5, 1
    s_and_b32 s7, s5, 1
    s_mul_i32 s40, s5, {2048*NE}
    s_add_u32 s40, s40, {LE}
    s_mul_i32 s48, s5, {2048*(DW-NE)}
    s_and_b32 s44, s2, 7
    s_lshr_b32 s45, s2, 3
    s_and_b32 s47, s44, 1
    s_add_u32 s36, s45, s47
    s_cmp_lt_u32 s36, 25
    s_cselect_b32 s46, 4, 0
    s_lshr_b32 s50, s44, 1
    s_mul_i32 s50, s50, 49
    s_mul_i32 s47, s47, 25
    s_add_u32 s50, s50, s47
    s_add_u32 s51, s45, s50
    s_mul_i32 s50, s51, 9363
    s_lshr_b32 s50, s50, 16
    s_mul_i32 s47, s50, 7
    s_sub_u32 s51, s51, s47
    s_and_b32 s47, s50, 3
    s_lshl_b32 s49, s5, 2
    s_add_u32 s49, s49, s47
    s_sub_u32 s47, 4, s47
    s_mul_i32 s38, s49, {128*3584}
    s_lshl_b32 s52, s50, 7
    s_add_u32 s38, s38, s52
    s_lshl_b32 s39, s51, 4
    s_add_u32 s39, s39, s49
    s_lshl_b32 s39, s39, 14
    s_add_u32 s39, s39, {WS_HT}
    s_lshl_b32 s37, s6, 6
    s_add_u32 s52, s52, s37
    s_lshl_b32 s53, s51, 2
    s_add_u32 s53, s53, s5
    s_lshl_b32 s53, s53, {5+FB}
    s_add_u32 s53, s53, {WS_FH}
    v_mov_b32 v8, 0
    s_waitcnt lgkmcnt(0)""")
    k.ld(255, 1, 8, DBG, 0, 0, 'sc1')
    A = A1
    p = dict(dma=(10,11,W1,'s38',16*3584), frag=(12,13,WS,'s39'), trv=14, roff=512, acc=A, w_is_a=True, wrap=(8,'s47',32))
    st = [dict(p, i=s) for s in range(32)]
    if not ENV('PFN', 2): st[PFS]['post'] = lambda: w2pref(k, W2, WO)
    g = Gemm(k, st, DW, DF, FR, TR)
    def ringfill():
        k("s_cmp_eq_u32 s46, 0"); k.br("s_cbranch_scc1", "nofill")
        dma_offs(k, 10, 11, 3584)
        for i in range(NE): g.loadW()
        k("v_lshlrev_b32 v7, 3, v2")
        for i in range(4): k.ld(18+2*i, 2, 7, B1, 's52', 16*i)
        k.lab("nofill")
        return 2*NE + 4
    gprep(k, X, GW, WK, W1, WS, ringfill)
    k.srds(dict(wo=WO, b2=B2, out=OUT))
    k("s_waitcnt lgkmcnt(0)")
    lwait(k, CX, 4)
    k("s_cmp_eq_u32 s46, 0"); k.br("s_cbranch_scc1", "pref")
    ringfill()
    frag_offs(k, 12, 13, 's7'); tr_offs(k, 14, 8, 's6')
    k(f"v_lshlrev_b32 v32, {FB}, v3")
    poll(k, 32, WS, 's53', TAG); k.stamp(12); g.q = []
    for i in range(LF): g.loadF()
    lwait(k, CQ1, 4)
    k(f"s_setprio {ENV('PRIO', 1)}")
    g.run(1)
    k("s_setprio 2")
    red_write(k, A, 's5', 0, 14336)
    arrive(k, CG1)
    k(f"""s_mul_i32 s39, s51, 28
    s_add_u32 s39, s39, s50
    s_lshl_b32 s38, s39, 1
    s_add_u32 s38, s38, s6
    s_lshl_b32 s38, s38, 12
    s_add_u32 s38, s38, {WS_U}
    s_lshl_b32 s39, s39, 2
    s_add_u32 s39, s39, s5
    s_lshl_b32 s39, s39, {FB}
    s_add_u32 s39, s39, {WS_FU}""")
    n0 = len(k.L)
    k(f"""s_and_b32 s36, s44, 1
    s_lshl_b32 s36, s36, 2
    s_lshr_b32 s4, s45, 3
    s_add_u32 s4, s4, s36
    s_cmp_ge_u32 s4, 7"""); k.br("s_cbranch_scc1", "end")
    k(f"""s_and_b32 s47, s45, 3
    s_lshr_b32 s3, s44, 1
    s_lshl_b32 s3, s3, 3
    s_and_b32 s36, s45, 7
    s_add_u32 s3, s3, s36
    s_lshl_b32 s49, s5, 2
    s_add_u32 s49, s49, s47
    s_sub_u32 s47, 4, s47
    s_mul_i32 s50, s49, {112*4096}
    s_lshl_b32 s36, s3, 7
    s_add_u32 s50, s50, s36
    s_lshl_b32 s51, s4, 4
    s_add_u32 s51, s51, s49
    s_mul_i32 s51, s51, {7*2048}
    s_add_u32 s51, s51, {WS_U}
    s_mul_i32 s52, s5, {112*896}
    s_lshl_b32 s36, s4, 7
    s_add_u32 s52, s52, s36
    s_lshl_b32 s53, s3, 2
    s_add_u32 s53, s53, s5
    s_lshl_b32 s55, s53, {3+FB}
    s_add_u32 s55, s55, {WS_FO}
    s_mul_i32 s53, s53, {7*2048}
    s_add_u32 s53, s53, {WS_O}
    s_lshl_b32 s54, s4, 2
    s_add_u32 s54, s54, s5
    s_mul_i32 s54, s54, {28<<FB}
    s_mov_b32 s49, {WS_FU}""")
    dma_offs(k, 10, 11, 4096)
    p1 = dict(dma=(10,11,W2,'s50',65536), frag=(26,27,WS,'s51'), trv=14, roff=1024, acc=A1, w_is_a=False, wrap=(7,'s47',28))
    p2 = dict(dma=(18,19,WO,'s52',16*896), frag=(12,13,WS,'s53'), trv=20, roff=1024, acc=A2, w_is_a=True)
    st = [dict(p1, i=s) for s in range(28)] + [dict(p2, i=s) for s in range(7)]
    def pre0():
        k.stamp(4); poll(k, 32, WS, 's49', TAG); k.stamp(5)
        k.ld(29, 1, 34, WS, 's36', 0, 'sc1'); k.ld(30, 1, 35, WS, 's36', 0, 'sc1')
        k(f"s_setprio {ENV('PRIO2', 0)}")
    st[0]['preF'] = pre0
    def pre28():
        k.stamp(8)
        if ENV('ASY', 3):
            g.wait(('X', 28-g.LF-ENV('ASY', 3)))
            k(f"v_cmp_ne_u32 vcc, {TAG}, v36"); k.br("s_cbranch_vccz", "ordy")
        poll(k, 33, WS, 's55', TAG); k.lab("ordy"); k.stamp(9)
        return ENV('ASY', 3)
    st[28]['preF'] = pre28
    if ENV('ASY', 3): st[28-ENV('LF2', 4)-ENV('ASY', 3)]['post'] = lambda: (k.ld(36, 1, 33, WS, 's55', 0, 'sc1'), 1)[1]
    g = Gemm(k, st, DW, DF, FR, TR, ENV('LW2', 5), ENV('LF2', 4))
    for i in range(NE): g.loadW()
    setup = k.L[n0:]
    lwait(k, CG1, 4)
    red_read(k, A, 's5', 0, 14336)
    arrive(k, CG2)
    c0 = -2*0.7978845608028654*1.4426950408889634; T = A + 16
    for i in range(8): k(f"v_lshlrev_b32 v{T+2*i}, 16, v{18+i}\nv_and_b32 v{T+1+2*i}, 0xffff0000, v{18+i}")
    k(f"v_mov_b32 v8, {c0!r}\nv_mov_b32 v9, {c0*0.044715!r}")
    for i in range(16): k(f"v_add_f32 v{A+i}, v{A+i}, v{T+i}")
    for i in range(16): k(f"v_mul_f32 v{T+i}, v{A+i}, v{A+i}")
    for i in range(16): k(f"v_fma_f32 v{T+i}, v{T+i}, v9, v8")
    for i in range(16): k(f"v_mul_f32 v{T+i}, v{T+i}, v{A+i}")
    for i in range(16): k(f"v_exp_f32 v{T+i}, v{T+i}")
    for i in range(16): k(f"v_add_f32 v{T+i}, 1.0, v{T+i}")
    for i in range(16): k(f"v_rcp_f32 v{T+i}, v{T+i}")
    for i in range(16): k(f"v_mul_f32 v{A+i}, v{A+i}, v{T+i}")
    for i in range(8): k.cvt(16+i, A+2*i, A+2*i+1)
    k.st(16, 4, 12, WS, 's38', 0, 'sc1'); k.st(20, 4, 12, WS, 's38', 2048, 'sc1')
    publish(k, WS, 's39', TAG); k.stamp(3)
    k.br("s_branch", "g2")
    k.lab("pref")
    if ENV('PFN', 2): w2pref2(k, W2, WO, WS)
    else: w2pref(k, W2, WO)
    k.lab("g2s"); k("s_setprio 2"); k.L += setup
    k.lab("g2")
    tr_offs(k, 14, 4, 's7'); dma_offs(k, 18, 19, 896); tr_offs(k, 20, 4, 's6')
    frag_offs(k, 12, 13, 's7'); frag_offs(k, 26, 27, 's6')
    k(f"""s_lshl_b32 s36, s3, 1
    s_add_u32 s36, s36, s7
    v_lshl_add_u32 v28, s36, 5, v3
    v_lshlrev_b32 v34, 2, v28
    v_xor_b32 v35, 128, v34
    v_lshlrev_b32 v9, 1, v28
    s_lshl_b32 s36, s3, {2+FB}
    v_lshl_add_u32 v33, v6, {FB}, s36
    v_add_u32 v33, {WS_FH-WS_FU}, v33
    v_cmp_gt_u32 vcc, 28, v1
    v_lshl_add_u32 v32, v1, {FB}, s54
    s_mov_b32 s36, {WS_G}
    v_cndmask_b32 v32, v33, v32, vcc
    v_and_b32 v33, 7, v1
    v_lshlrev_b32 v33, {FB}, v33
    buffer_load_ushort v31, v9, {R(B2,4,'s')}, 0 offen""")
    lwait(k, CG2, 's46'); lwait(k, CQ1, 4)
    for i in range(DW-NE): g.loadW()
    g.run(6)
    k("s_setprio 2")
    k("v_sub_f32 v29, 1.0, v29\nv_sub_f32 v30, 1.0, v30\nv_lshlrev_b32 v31, 16, v31")
    for i in range(16): k(f"v_add_f32 v{A1+i}, v{A1+i}, v31")
    for u in (1, 2, 3, 0):
        for i in range(16): k(f"v_fmac_f32 v{A2+16*u+i}, v{A1+16*u+i}, v{29+(u&1)}")
    k.stamp(10)
    red_write(k, A2, 's5', 0, 14336)
    arrive(k, CG3); lwait(k, CG3, 4)
    red_read(k, A2, 's5', 0, 14336)
    k(f"""v_mul_u32_u24 v7, 896, v28
    v_lshl_add_u32 v7, v2, 4, v7
    s_lshl_b32 s36, s4, 1
    s_add_u32 s36, s36, s6
    s_lshl_b32 s36, s36, 6""")
    for h in range(2):
        b = A2 + 8*h; t = 40 + 4*h
        k.cvt(t, b, b+1); k.cvt(t+1, b+2, b+3); k.cvt(t+2, b+4, b+5); k.cvt(t+3, b+6, b+7)
        k(f"v_permlane32_swap_b32 v{t}, v{t+2}\nv_permlane32_swap_b32 v{t+1}, v{t+3}")
        k.st(t, 4, 7, OUT, 's36', 32*h, ('', 'sc1', 'nt', 'sc0 sc1')[ENV('OSC')])
def gen_f():
    k = K("gated_mix__grouped_kv_mqa__mixer_token_mlp__prompt_kernel", 256)
    k("s_cmp_ge_u32 s2, 256"); k.br("s_cbranch_scc1", "end")
    if ENV('PERM'): k("s_and_b32 s3, s2, 7\ns_lshl_b32 s3, s3, 5\ns_lshr_b32 s2, s2, 3\ns_or_b32 s2, s2, s3")
    k("v_lshrrev_b32 v1, 6, v0\ns_and_b32 s3, s2, 31\nv_readfirstlane_b32 s5, v1\ns_lshr_b32 s4, s2, 5")
    lane_fields(k, 0)
    k(f"v_and_b32 v7, 15, v1\nv_lshlrev_b32 v7, 2, v7\nv_add_u32 v7, {LC}, v7\nv_mov_b32 v8, 0\nds_write_b32 v7, v8\ns_waitcnt lgkmcnt(0)\ns_barrier")
    k("s_cmp_ge_u32 s5, 4"); k.br("s_cbranch_scc1", "g")
    X, WS, WQ = 8, 12, 16
    k.srds(dict(x=X, dbg=DBG, wq=WQ, ws=WS, w1=20))
    k("s_memrealtime s[60:61]\ns_or_b32 s6, s2, s5\ns_waitcnt lgkmcnt(0)\ns_cmp_eq_u32 s6, 0"); k.br("s_cbranch_scc0", "nononce")
    k("s_or_b32 s60, s60, 1"); publish(k, DBG, 0, 's60')
    k.lab("nononce")
    k.ld(255, 1, 8, DBG, 0, 0, 'sc1')
    k("s_setprio 2"); aprep(k, X, WQ, WS)
    attn(k, WS)
    k.lab("g")
    k("s_setprio 3")
    gemms(k)
    k.lab("end"); k("s_waitcnt vmcnt(0)\ns_endpgm")
    return k
if __name__ == "__main__":
    import sys
    from hazard import pad
    k = gen_f(); k.finish(0); k.L = pad(k.L)
    hdr = f"; @launch kernel={k.name} " if ENV('STAMP') == 1 else "; @launch "
    t = hdr + f"grid=(256,1,1) block=(512,1,1) lds={LDS}\n" + '.amdgcn_target "amdgcn-amd-amdhsa--gfx950"\n' + k.text().replace(k.name + "_", "L_")
    open(sys.argv[1] if len(sys.argv) > 1 else "gated_mix__grouped_kv_mqa__mixer_token_mlp__prompt.s", "w").write(t)
```

```python
import os
ENV = lambda n, d=0: int(os.environ.get(n, d))
STAMP = int(os.environ.get('STAMP', 0))
WS_Q, WS_KV, WS_HT, WS_U, WS_O, WS_G, WS_END = 0, 0x200000, 0x280000, 0x480000, 0x680000, 0x880000, 0x980000
WS_FU, WS_FO, WS_FH, WS_FK = 0x900000, 0x920000, 0x940000, 0x960000
FB = ENV('FB', 7)
ARG = dict(x=0, wq=8, wk=16, wv=24, wo=32, w1=48, b1=56, w2=64, b2=72, gw=80, out=88, dbg=96, ws=104)
SIZE = dict(x=1835008, wq=401408, wk=25088, wv=25088, wo=401408, w1=7340032, b1=3584, w2=7340032, b2=4096,
            gw=896, out=1835008, dbg=256, ws=WS_END)
def R(a, n, p='v'): return f"{p}[{a}:{a+n-1}]" if n > 1 else f"{p}{a}"
class K:
    def __init__(s, name, nv=256):
        s.name, s.nv, s.L = name, nv, []
    def __call__(s, t):
        for l in t.strip().split("\n"): s.L.append(" " + l.strip())
    def lab(s, n): s.L.append(f"{s.name}_{n}:")
    def br(s, op, n): s(f"{op} {s.name}_{n}")
    def srds(s, m):
        for nm, r in m.items(): s(f"s_load_dwordx2 {R(r,2,'s')}, s[0:1], {ARG[nm]}")
        for nm, r in m.items(): s(f"s_mov_b32 s{r+2}, {SIZE[nm]}\ns_mov_b32 s{r+3}, 0x20000")
    def mfma(s, d, a, b, c=None):
        cc = R(d,16) if c is None else c
        s(f"v_mfma_f32_32x32x16_bf16 {R(d,16)}, {R(a,4)}, {R(b,4)}, {cc}")
    def ld(s, d, n, voff, srd, soff=0, off=0, fl=''):
        op = {1:'dword',2:'dwordx2',4:'dwordx4'}[n]
        s(f"buffer_load_{op} {R(d,n)}, v{voff}, {R(srd,4,'s')}, {soff} offen offset:{off} {fl}")
    def st(s, d, n, voff, srd, soff=0, off=0, fl=''):
        op = {1:'dword',2:'dwordx2',4:'dwordx4'}[n]
        s(f"buffer_store_{op} {R(d,n)}, v{voff}, {R(srd,4,'s')}, {soff} offen offset:{off} {fl}")
    def dma(s, voff, srd, soff=0, off=0, fl=''):
        s(f"buffer_load_dwordx4 v{voff}, {R(srd,4,'s')}, {soff} offen offset:{off} {fl} lds")
    def tr(s, d, va, off): s(f"ds_read_b64_tr_b16 {R(d,2)}, v{va} offset:{off}")
    def cvt(s, d, a, b): s(f"v_cvt_pk_bf16_f32 v{d}, v{a}, v{b}")
    def stamp(s, i):
        if STAMP: s(f"s_memrealtime s[{64+2*i}:{65+2*i}]\ns_waitcnt lgkmcnt(0)")
    def finish(s, idx):
        if not STAMP: return
        s.L = [f" s_branch {s.name}_stamp" if l.strip() == "s_endpgm" else l for l in s.L]
        s.L = [f" s_mov_b32 s{64+2*i}, 0" for i in range(1, 14)] + [" s_memrealtime s[64:65]", " s_memtime s[92:93]"] + s.L
        s.lab("stamp")
        if ENV('STAMP') > 1:
            s(f"""s_mov_b64 exec, -1
            s_waitcnt vmcnt(0) lgkmcnt(0)
            s_memrealtime s[90:91]
            s_load_dwordx2 s[96:97], s[0:1], {ARG['dbg']}
            s_mov_b32 s98, 64
            s_mov_b32 s99, 0x20000
            v_lshrrev_b32 v2, 8, v0
            v_and_b32 v1, 63, v0
            v_readfirstlane_b32 s5, v2
            v_mov_b32 v2, 0
            v_mov_b32 v3, 0
            s_waitcnt lgkmcnt(0)""")
            for v, o, js in ((2, 1, (0, 3, 5, 2, 8, 13)), (3, 7, (11, 12, 1, 2, 3, 5, 6, 10, 13))):
                for n, j in enumerate(js):
                    s(f"s_sub_u32 s6, s{64+2*j}, s60\ns_cmp_eq_u32 s{64+2*j}, 0\ns_cselect_b32 s6, 0, s6\nv_writelane_b32 v{v}, s6, {o+n}")
            s(f"""s_cmp_eq_u32 s5, 0
            s_cselect_b64 vcc, -1, 0
            v_cndmask_b32 v2, v3, v2, vcc
            v_lshlrev_b32 v1, 2, v1
            s_cmp_lt_u32 s2, 256
            s_cselect_b64 exec, 0xfffe, 0
            buffer_atomic_{('smax', 'add')[ENV('STAMP')-2]} v2, v1, s[96:99], 0 offen sc1
            s_waitcnt vmcnt(0)
            s_endpgm""")
            return
        s(f"""s_mov_b64 exec, -1
        s_waitcnt vmcnt(0) lgkmcnt(0)
        s_memrealtime s[90:91]
        s_memtime s[94:95]
        s_load_dwordx2 s[96:97], s[0:1], {ARG['ws']}
        s_mov_b32 s98, 0x1000000
        s_mov_b32 s99, 0x20000
        v_lshrrev_b32 v1, 6, v0
        v_lshl_add_u32 v1, s2, 3, v1
        v_lshlrev_b32 v1, 6, v1
        v_add_u32 v1, {0xa00000 + idx*0x40000}, v1
        s_waitcnt lgkmcnt(0)
        s_sub_u32 s92, s94, s92""")
        s("s_getreg_b32 s94, hwreg(HW_REG_XCC_ID)")
        for i in range(16):
            s(f"v_mov_b32 v2, s{64+2*i}"); s.st(2, 1, 1, 96, 0, 4*i)
        s("s_endpgm")
    def text(s):
        n = s.name
        return (f".text\n.globl {n}\n.p2align 8\n.type {n},@function\n{n}:\n" + "\n".join(s.L) +
f"""
.section .rodata,"a"
.p2align 6
.amdhsa_kernel {n}
  .amdhsa_next_free_vgpr {s.nv}
  .amdhsa_next_free_sgpr 102
  .amdhsa_accum_offset {min(s.nv,256)}
  .amdhsa_group_segment_fixed_size 0
  .amdhsa_kernarg_size 112
  .amdhsa_user_sgpr_count 2
  .amdhsa_user_sgpr_kernarg_segment_ptr 1
  .amdhsa_system_sgpr_workgroup_id_x 1
.end_amdhsa_kernel
""")
def lane_fields(k, trrow):
    k("""v_and_b32 v1, 63, v0
    v_lshrrev_b32 v2, 5, v1
    v_and_b32 v3, 31, v1
    v_bfe_u32 v4, v1, 2, 2
    v_and_b32 v5, 16, v1
    v_and_b32 v6, 3, v1
    v_lshlrev_b32 v5, 1, v5
    v_lshl_add_u32 v5, v6, 3, v5""")
```

```python
from gen_common import *
from gen_gemm import *
LX, LWQ, LHL, LE, LC, LDS = 0, 57344, 107520, 121856, 162816, 162944
LRED, LFLAG = LWQ, LC
CA, CG1, CG2, CG3, CX, CW, CQ1, CQ2, CH, CK, CH2, CA2 = [LC + 16 + 4*i for i in range(12)]
TAG, DW, DF, DBG = 's60', 12, 8, 56
Q, O, S, P, KV, MX = 16, 48, 112, 144, 160, 224
W1G = ENV('W1G', 1)
def proj(k, wstride, swap, acc=64):
    def rd(s):
        b = 16 + (s % 4) * 8
        k(f"ds_read_b128 {R(b,4)}, v{10+s%4} offset:{128*(s//4)}")
        k.tr(b+4, 14, 16*wstride*s); k.tr(b+6, 14, 16*wstride*s + 4*wstride)
    for s in range(3): rd(s)
    for s in range(28):
        if s + 3 < 28: rd(s+3)
        k(f"s_waitcnt lgkmcnt({3*min(3, 27-s)})")
        b = 16 + (s % 4) * 8
        a_, b_ = (b, b+4) if swap else (b+4, b)
        k.mfma(acc, a_, b_, '0' if s == 0 else None)
    k("s_nop 7\ns_nop 7")
def xbases(k, sth):
    k(f"""v_lshl_add_u32 v7, {sth}, 5, v3
    v_bfe_u32 v8, v7, 1, 3
    v_mul_u32_u24 v7, 896, v7""")
    for b in range(4):
        k(f"v_or_b32 v9, {2*b}, v2\nv_xor_b32 v9, v9, v8\nv_lshl_add_u32 v{10+b}, v9, 4, v7")
def aprep(k, X, WQ, WS):
    if ENV('APF', 1):
        k(f"""s_lshl_b32 s6, s4, 2
        s_add_u32 s6, s6, s5
        s_mul_i32 s6, s6, {14*128}
        s_mul_i32 s7, s3, 57344
        s_add_u32 s6, s6, s7
        v_min_u32 v7, 13, v1
        v_lshlrev_b32 v7, 7, v7
        s_lshr_b32 s7, s2, 3
        s_lshl_b32 s7, s7, 2
        s_add_u32 s7, s7, s5
        s_mul_i32 s7, s7, 25
        v_min_u32 v9, 24, v1
        v_add_u32 v9, s7, v9
        v_min_u32 v9, 3135, v9
        v_lshlrev_b32 v9, 7, v9""")
        k.ld(253, 1, 7, X, 's6'); k.ld(252, 1, 9, WQ, 0)
    k("""s_mul_i32 s6, s3, 57344
    s_mul_i32 s7, s5, 14336
    s_add_u32 s6, s6, s7
    s_mov_b32 m0, s7""")
    for i in range(14):
        k(f"""v_add_u32 v7, {64*i}, v1
        v_mul_u32_u24 v8, 1171, v7
        v_lshrrev_b32 v8, 17, v8
        v_xor_b32 v7, v7, v8
        v_lshlrev_b32 v7, 4, v7""")
        k.dma(7, X, 's6', 0, 'nt'*ENV('NTA')); k("s_add_u32 m0, m0, 1024")
    if ENV('DLK', 1):
        k("s_cmp_eq_u32 s4, 7"); k.br("s_cbranch_scc0", "nodlk")
        k("s_waitcnt vmcnt(0)"); arrive(k, CH2); lwait(k, CK, 4); k.lab("nodlk")
    k(f"s_mul_i32 s7, s5, 12288\ns_add_u32 m0, s7, {LWQ}\ns_mul_i32 s6, s4, 112\ns_mul_i32 s7, s5, 768\nv_add_u32 v9, s7, v1")
    for i in range(13):
        k(f"""v_add_u32 v7, {64*i}, v9
        v_mul_u32_u24 v8, 9363, v7
        v_lshrrev_b32 v8, 16, v8
        v_mul_u32_u24 v8, 784, v8
        v_lshl_add_u32 v7, v7, 4, v8""")
        k.dma(7, WQ, 's6', 0, 'nt'*ENV('NTA')); k("s_add_u32 m0, m0, 1024")
    e = 0 if W1G else 1
    if e: k("s_and_b32 s44, s2, 7\ns_lshr_b32 s45, s2, 3"); w1pref(k, 20)
    k("s_and_b32 s6, s5, 1\ns_lshr_b32 s7, s5, 1\ns_mul_i32 s7, s7, 56")
    xbases(k, 's6')
    k(f"""v_lshl_add_u32 v14, v2, 3, v4
    v_mul_u32_u24 v14, 112, v14
    v_add3_u32 v14, v14, v5, s7
    v_add_u32 v14, {LWQ}, v14
    s_waitcnt vmcnt({13+e})""")
    arrive(k, CX); k(f"s_waitcnt vmcnt({e})"); arrive(k, CW); k.stamp(3); lwait(k, CW, 4)
    proj(k, 112, False)
    arrive(k, CQ1)
    for i in range(16): k(f"v_mul_f32 v{64+i}, {28**-0.5*1.4426950408889634!r}, v{64+i}")
    k("v_cmp_gt_u32 vcc, 32, v1")
    for i in range(8): k.cvt(16+i, 64+2*i, 65+2*i)
    k(f"""v_cndmask_b32 v22, 0, v22, vcc
    v_cndmask_b32 v23, 0, v23, vcc
    v_lshlrev_b32 v10, 4, v1
    s_lshl_b32 s6, s5, 11
    v_add_u32 v7, s6, v10""")
    lwait(k, CQ1, 4)
    k(f"ds_write_b128 v7, v[16:19] offset:{LWQ}\nds_write_b128 v7, v[20:23] offset:{LWQ+1024}")
    arrive(k, CQ2); k.stamp(4)
    get_nonce(k, DBG)
    k(f"""s_lshl_b32 s6, s5, {5+FB}
    v_lshl_add_u32 v12, v3, {FB}, s6
    v_add_u32 v12, {WS_FK-WS_FU}, v12
    s_lshl_b32 s6, s3, {2+FB}
    v_lshl_add_u32 v13, v6, {FB}, s6
    v_add_u32 v13, {WS_FH-WS_FU}, v13
    v_mov_b32 v14, {WS_FK-WS_FU}
    v_cmp_gt_u32 vcc, 48, v1
    v_cndmask_b32 v13, v14, v13, vcc
    v_cmp_gt_u32 vcc, 32, v1
    v_cndmask_b32 v12, v13, v12, vcc
    s_mov_b32 s6, {WS_FU}""")
    lwait(k, CQ2, 4)
    for u in range(1, 4):
        k(f"v_xor_b32 v8, {2048*u}, v7\nds_read_b128 {R(Q+8*u,4)}, v8 offset:{LWQ}\nds_read_b128 {R(Q+8*u+4,4)}, v8 offset:{LWQ+1024}")
    poll(k, 12, WS, 's6', TAG); k.stamp(5)
def attn(k, WS):
    k(f"""s_lshl_b32 s31, s5, 16
    s_add_u32 s31, s31, {WS_KV}
    s_lshl_b32 s7, s3, 1
    s_and_b32 s34, s5, 1
    s_add_u32 s7, s7, s34
    v_lshl_add_u32 v7, s7, 5, v3
    v_lshlrev_b32 v7, 2, v7
    s_mov_b32 s34, {WS_G}
    s_mov_b32 s36, 1
    s_mov_b32 s37, 0
    s_waitcnt lgkmcnt(0)""")
    k.ld(11, 1, 7, WS, 's34', 0, 'sc1')
    if ENV('NOA'): k("s_waitcnt vmcnt(0)"); k.br("s_branch", "fin")
    k.lab("pass")
    k(f"s_mov_b32 s30, {WS_KV}\ns_mov_b32 s35, s36")
    for u in range(4): k(f"v_mov_b32 v{MX+u}, 0xff800000")
    k.lab("mx")
    k.ld(MX+8, 4, 10, WS, 's30', 0, 'sc1'); k.ld(MX+12, 4, 10, WS, 's30', 1024, 'sc1')
    k("s_add_u32 s30, s30, 4096\ns_sub_u32 s35, s35, 1\ns_cmp_lg_u32 s35, 0"); k.br("s_cbranch_scc1", "nopre")
    k("s_mov_b32 s30, s31")
    for t in range(3):
        for i in range(4): k.ld(KV+16*t+4*i, 4, 10, WS, 's30', 1024*i, 'sc1')
        k("s_add_u32 s30, s30, 4096")
    k("s_waitcnt vmcnt(12)"); k.br("s_branch", "mx2")
    k.lab("nopre"); k("s_waitcnt vmcnt(0)")
    k.lab("mx2")
    arrive(k, CA2)
    k.stamp(1)
    for u in range(4):
        k.mfma(O+16*u, MX+8, Q+8*u, '0'); k.mfma(O+16*u, MX+12, Q+8*u+4)
    for u in range(4):
        for i in range(8): k(f"v_max3_f32 v{MX+u}, v{O+16*u+2*i}, v{O+16*u+2*i+1}, v{MX+u}")
    k("s_cmp_lg_u32 s35, 0"); k.br("s_cbranch_scc1", "mx")
    k("v_cmp_gt_u32 vcc, 32, v1")
    for u in range(4): k(f"v_mov_b32 v{MX+4+u}, v{MX+u}")
    for u in range(4): k(f"v_permlane32_swap_b32 v{MX+u}, v{MX+4+u}")
    for u in range(4):
        m, t = MX+u, MX+4+u
        k(f"""v_max_f32 v{m}, v{m}, v{t}
        v_xor_b32 v{m}, 0x80000000, v{m}
        v_and_b32 v{t}, 0xffff0000, v{m}
        v_sub_f32 v{m}, v{m}, v{t}
        v_lshrrev_b32 v{t}, 16, v{t}
        v_and_b32 v8, 0xffff0000, v{m}
        v_sub_f32 v{m}, v{m}, v8
        v_or_b32 v{t}, v{t}, v8
        v_lshrrev_b32 v{m}, 16, v{m}
        v_cndmask_b32 v{Q+8*u+6}, v{t}, v{Q+8*u+6}, vcc
        v_cndmask_b32 v{Q+8*u+7}, v{m}, v{Q+8*u+7}, vcc""")
    for i in range(64): k(f"v_mov_b32 v{O+i}, 0")
    for i in range(4): k(f"v_mov_b32 v{P+12+i}, 0\nv_mov_b32 v{KV+60+i}, 0")
    k("s_waitcnt vmcnt(8)\ns_mov_b32 s35, 4")
    k.mfma(S, KV, Q, '0'); k.mfma(S, KV+4, Q+4)
    k("s_nop 11")
    k.stamp(2)
    k.lab("loop")
    for n in range(16):
        t, u = n >> 2, n & 3
        s, p = S + 16*(n & 1), P + 8*(n & 1)
        n1 = (n+1) & 15; s1, k1, q1 = S + 16*(n1 & 1), KV + 16*(n1 >> 2), Q + 8*(n1 & 3)
        n0 = (n-1) & 15
        ex = lambda a, b: [k(f"v_exp_f32 v{s+i}, v{s+i}") for i in range(a, b)]
        cv = lambda a, b: [k.cvt(p+i, s+2*i, s+2*i+1) for i in range(a, b)]
        if u == 3: k("s_waitcnt vmcnt(8)")
        k.mfma(s1, k1, q1, '0')
        ex(0, 5); cv(0, 2)
        k.mfma(O+16*(n0 & 3), KV+16*(n0 >> 2)+12, P+8*(n0 & 1)+4)
        if u == 0:
            k("s_setprio 3")
            for i in range(4): k.ld(KV+16*((t+3) & 3)+4*i, 4, 10, WS, 's30', 1024*i, 'sc1')
            k(f"s_setprio {ENV('PRIOA')}")
            k("s_add_u32 s30, s30, 4096")
        ex(5, 9); cv(2, 4)
        k.mfma(s1, k1+4, q1+4)
        ex(9, 13); cv(4, 6)
        k.mfma(O+16*u, KV+16*t+8, p)
        ex(13, 16); cv(6, 8)
    if ENV('PFL', 1): arrive(k, CA2)
    k("s_sub_u32 s35, s35, 1\ns_cmp_lg_u32 s35, 0"); k.br("s_cbranch_scc1", "loop")
    k.mfma(O+48, KV+60, P+12)
    k(f"""v_mov_b32 v8, 0x5f800000
    v_cmp_nlt_f32 s[38:39], v{O+12}, v8
    v_cmp_nlt_f32 vcc, v{O+28}, v8
    s_or_b32 s39, s39, vcc_hi
    v_cmp_nlt_f32 vcc, v{O+44}, v8
    s_or_b32 s39, s39, vcc_hi
    v_cmp_nlt_f32 vcc, v{O+60}, v8
    s_or_b32 s39, s39, vcc_hi
    s_lshl_b32 s38, s5, 2
    v_mov_b32 v8, s39
    v_mov_b32 v9, s38
    v_add_u32 v9, {LFLAG}, v9
    ds_write_b32 v9, v8""")
    k("s_setprio 3"); k.stamp(8); red_write(k, O, 's5', LRED, 12288)
    arrive(k, CA); k("s_add_u32 s37, s37, 4"); lwait(k, CA, 's37'); k.stamp(9)
    k(f"""v_mov_b32 v9, {LFLAG}
    ds_read_b128 v[12:15], v9""")
    red_read(k, O, 's5', LRED, 12288)
    k("v_or_b32 v12, v12, v13\nv_or3_b32 v12, v12, v14, v15\nv_readfirstlane_b32 s38, v12\ns_cmp_eq_u32 s38, 0")
    k.br("s_cbranch_scc1", "fin")
    k("s_cmp_eq_u32 s36, 1"); k.br("s_cbranch_scc0", "fin")
    k("s_mov_b32 s36, 64\nv_cmp_gt_u32 vcc, 32, v1")
    for u in range(4): k(f"v_cndmask_b32 v{Q+8*u+6}, 0, v{Q+8*u+6}, vcc\nv_cndmask_b32 v{Q+8*u+7}, 0, v{Q+8*u+7}, vcc")
    arrive(k, CA); k("s_add_u32 s37, s37, 4"); lwait(k, CA, 's37'); k("s_waitcnt vmcnt(0)"); k.br("s_branch", "pass")
    k.lab("fin")
    k(f"""v_mov_b32 v8, v{O+12}
    v_mov_b32 v9, v{O+12}
    s_lshl_b32 s6, s4, 1
    s_lshr_b32 s7, s5, 1
    v_permlane32_swap_b32 v8, v9
    s_add_u32 s6, s6, s7
    s_mul_i32 s6, s6, 7
    v_rcp_f32 v9, v9
    s_mul_i32 s7, s3, 56
    s_and_b32 s34, s5, 1
    v_mul_f32 v9, v9, v11
    s_add_u32 s7, s7, s34
    s_lshl_b32 s7, s7, 10
    s_add_u32 s7, s7, {WS_O}""")
    for i in range(16): k(f"v_mul_f32 v{O+i}, v{O+i}, v9")
    for i in range(8): k.cvt(P+i, O+2*i, O+2*i+1)
    for i in range(4):
        k(f"""v_add3_u32 v8, s6, v2, {2*i}
        v_lshrrev_b32 v12, 2, v8
        v_lshlrev_b32 v12, 11, v12
        v_and_b32 v13, 1, v8
        v_lshl_add_u32 v12, v13, 9, v12
        v_and_b32 v13, 2, v8
        v_lshl_add_u32 v12, v13, 2, v12
        v_lshl_add_u32 v12, v3, 4, v12""")
        if i == 3: k("s_mov_b32 exec_hi, 0")
        k.st(P+2*i, 2, 12, WS, 's7', 0, 'sc1')
    k(f"s_lshl_b32 s6, s3, 3\ns_add_u32 s6, s6, s4\ns_lshl_b32 s6, s6, 2\ns_add_u32 s6, s6, s5\ns_lshl_b32 s6, s6, {FB}\ns_add_u32 s6, s6, {WS_FO}")
    publish(k, WS, 's6', TAG)
    k("s_endpgm")
def gprep(k, X, GW, WK, W1, WS, ringfill):
    k("s_cmp_eq_u32 s4, 7"); k.br("s_cbranch_scc1", "kv")
    k("s_cmp_ge_u32 s4, 4"); k.br("s_cbranch_scc0", "ln")
    def w1p(lab):
        w1pref(k, W1)
        k("s_cmp_lt_u32 s45, 24"); k.br("s_cbranch_scc1", lab)
        k(f"s_add_u32 s42, s42, {16*16*3584}"); k.ld(253, 1, 7, W1, 's42')
    if W1G == 3: w1p("w1q"); k.lab("w1q")
    if ENV('KPF', 1):
        k(f"""s_cmp_eq_u32 s6, 1
        s_cselect_b32 s{WK}, s62, s{WK}
        s_cselect_b32 s{WK+1}, s63, s{WK+1}
        s_sub_u32 s36, s45, 16
        s_lshl_b32 s36, s36, 1
        s_add_u32 s36, s36, s7
        s_mul_i32 s36, s36, 9
        v_min_u32 v7, 8, v1
        v_add_u32 v7, s36, v7
        v_min_u32 v7, 195, v7
        v_lshlrev_b32 v7, 7, v7""")
        k.ld(252, 1, 7, WK, 0)
    k("s_waitcnt vmcnt(0)"); get_nonce(k, DBG); k.br("s_branch", "w1p"); k.lab("ln")
    k(f"""s_lshl_b32 s36, s3, 2
    s_add_u32 s36, s36, s4
    s_lshl_b32 s37, s36, 2
    s_add_u32 s37, s37, s5
    v_lshl_add_u32 v50, s37, 2, v2
    v_lshlrev_b32 v7, 4, v3
    v_mov_b32 v9, 0x7ff00000
    v_cmp_gt_u32 vcc, 28, v3
    v_mul_u32_u24 v8, 896, v50
    v_cndmask_b32 v7, v9, v7, vcc
    v_add_u32 v8, v8, v7""")
    for i, o in enumerate((0, 448, 1792, 2240)): k.ld(52+4*i, 4, 8, X, 0, o)
    k.ld(68, 4, 7, GW); k.ld(72, 4, 7, GW, 0, 448)
    if W1G == 3: w1pref(k, W1)
    k(f"s_waitcnt vmcnt({int(W1G == 3)})")
    XR, GR = 80, 112
    for i in range(24): k(f"v_lshlrev_b32 v{XR+2*i}, 16, v{52+i}\nv_and_b32 v{XR+2*i+1}, 0xffff0000, v{52+i}")
    for r in range(2): k(f"v_mov_b32 v{40+r}, v{XR+16*r}\nv_mul_f32 v{42+r}, v{XR+16*r}, v{GR}")
    for i in range(1, 16):
        for r in range(2): k(f"v_add_f32 v{40+r}, v{40+r}, v{XR+16*r+i}\nv_fmac_f32 v{42+r}, v{XR+16*r+i}, v{GR+i}")
    def red(regs):
        for m in ("quad_perm:[1,0,3,2]", "quad_perm:[2,3,0,1]", "row_half_mirror", "row_mirror"):
            for r in regs: k(f"v_add_f32_dpp v{r}, v{r}, v{r} {m} row_mask:0xf bank_mask:0xf")
        for r in regs: k(f"ds_swizzle_b32 v{r+6}, v{r} offset:0x401F")
        k("s_waitcnt lgkmcnt(0)")
        for r in regs: k(f"v_add_f32 v{r}, v{r}, v{r+6}")
    red([40, 41, 42, 43])
    for r in range(2): k(f"v_mul_f32 v{40+r}, {1/448!r}, v{40+r}\nv_mul_f32 v{42+r}, -1.4426950408889634, v{42+r}\nv_mov_b32 v{128+r}, 0\nv_exp_f32 v{42+r}, v{42+r}")
    for i in range(16):
        for r in range(2): k(f"v_sub_f32 v{XR+16*r+i}, v{XR+16*r+i}, v{40+r}")
        for r in range(2): k(f"v_fmac_f32 v{128+r}, v{XR+16*r+i}, v{XR+16*r+i}")
    for r in range(2): k(f"v_cndmask_b32 v{128+r}, 0, v{128+r}, vcc\nv_add_f32 v{42+r}, 1.0, v{42+r}\nv_rcp_f32 v{42+r}, v{42+r}")
    red([128, 129])
    for r in range(2): k(f"v_mov_b32 v{40+r}, 1e-5\nv_fmac_f32 v{40+r}, {1/448!r}, v{128+r}\nv_rsq_f32 v{40+r}, v{40+r}")
    k(f"""v_and_b32 v9, 15, v50
    v_mul_u32_u24 v8, 896, v9
    v_lshl_add_u32 v8, v3, 4, v8
    v_add_u32 v8, {LHL}, v8
    v_lshlrev_b32 v9, 2, v9
    v_add_u32 v9, {LC+64}, v9
    ds_write_b32 v9, v42
    ds_write_b32 v9, v43 offset:8""")
    for i in range(32): k(f"v_mul_f32 v{XR+i}, v{XR+i}, v{40+i//16}")
    for i in range(16): k.cvt(52+i, XR+2*i, XR+2*i+1)
    k("s_mov_b64 exec, vcc")
    for i, o in enumerate((0, 448, 1792, 2240)): k(f"ds_write_b128 v8, {R(52+4*i,4)} offset:{o}")
    arrive(k, CH)
    k(f"""v_lshl_add_u32 v7, v2, 3, v4
    v_mul_u32_u24 v7, 896, v7
    s_lshl_b32 s37, s5, 7
    v_add3_u32 v7, v7, v5, s37
    v_add_u32 v7, {LHL}, v7
    s_add_u32 s49, s5, 4
    s_min_u32 s49, s49, 6
    s_sub_u32 s49, s49, s5
    s_lshl_b32 s42, s49, 7
    v_add_u32 v40, s42, v7
    s_add_u32 s37, s37, s36
    v_and_b32 v41, 15, v1
    v_lshlrev_b32 v41, 2, v41
    v_add_u32 v42, {LC+64}, v41
    v_lshlrev_b32 v43, 4, v1""")
    lwait(k, CH, 4)
    for i in range(4): k.tr(52+4*i, (7, 40)[i//2], 64*(i&1)); k.tr(54+4*i, (7, 40)[i//2], 64*(i&1) + 3584)
    k(f"""ds_read_b32 v42, v42
    s_lshl_b32 s42, s37, 11
    s_add_u32 s42, s42, {WS_HT}
    s_lshl_b32 s43, s49, 18
    s_add_u32 s43, s43, s42
    s_lshl_b32 s36, s36, 6
    s_add_u32 s36, s36, {WS_G}
    s_waitcnt lgkmcnt(0)""")
    for i in range(4): k.st(52+4*i, 4, 43, WS, ('s42', 's43')[i//2], 1024*(i&1), 'sc1')
    k.st(42, 1, 41, WS, 's36', 0, 'sc1')
    get_nonce(k, DBG)
    k(f"""s_lshl_b32 s37, s37, {FB}
    s_add_u32 s37, s37, {WS_FH}
    s_lshl_b32 s49, s49, {7+FB}
    v_mul_u32_u24 v8, s49, v1
    v_mov_b32 v9, s60
    s_waitcnt vmcnt(0)
    s_mov_b64 exec, 3""")
    k.st(9, 1, 8, WS, 's37', 0, 'sc1'); k("s_mov_b64 exec, -1"); k.stamp(11)
    k.lab("w1p")
    if W1G == 1: lwait(k, CX, 4); w1p("gp_done")
    k.br("s_branch", "gp_done")
    k.lab("kv")
    k(f"""s_cmp_eq_u32 s6, 1
    s_cselect_b32 s{WK}, s62, s{WK}
    s_cselect_b32 s{WK+1}, s63, s{WK+1}
    s_mul_i32 s36, s6, 26624
    s_add_u32 s36, s36, {LHL}
    s_lshl_b32 s37, s7, 10
    s_add_u32 m0, s36, s37
    v_lshl_add_u32 v7, v1, 4, s37""")
    for i in range(13): k.dma(7, WK); k("s_add_u32 m0, m0, 2048\nv_add_u32 v7, 2048, v7")
    xbases(k, 's7')
    k(f"""v_lshl_add_u32 v14, v2, 3, v4
    v_mul_u32_u24 v14, 56, v14
    v_add3_u32 v14, v14, v5, s36
    s_lshl_b32 s36, s3, 1
    s_add_u32 s36, s36, s7
    s_lshl_b32 s36, s36, 1
    s_add_u32 s36, s36, s6
    s_lshl_b32 s37, s36, {FB}
    s_add_u32 s37, s37, {WS_FK}
    s_lshl_b32 s36, s36, 11
    s_add_u32 s36, s36, {WS_KV}
    s_waitcnt vmcnt(0)""")
    arrive(k, CK); lwait(k, CK, 4); lwait(k, CH2 if ENV('DLK', 1) else CX, 4)
    k("s_cmp_eq_u32 s6, 1"); k.br("s_cbranch_scc1", "vv")
    proj(k, 56, False)
    k("v_cmp_gt_u32 vcc, 32, v1\nv_mov_b32 v8, 0x3f803f80\nv_mov_b32 v9, 0x3f80")
    for i in range(8): k.cvt(16+i, 64+2*i, 65+2*i)
    k("v_cndmask_b32 v22, v8, v22, vcc\nv_cndmask_b32 v23, v9, v23, vcc")
    k.br("s_branch", "st2")
    k.lab("vv")
    proj(k, 56, True)
    k("""v_cmp_eq_u32 vcc, 28, v3
    v_mov_b32 v8, 0x3f803f80
    v_cndmask_b32 v8, 0, v8, vcc
    v_cmp_gt_u32 vcc, 28, v3""")
    for i in range(8): k.cvt(16+i, 64+2*i, 65+2*i)
    for i in range(8): k(f"v_cndmask_b32 v{16+i}, v8, v{16+i}, vcc")
    k.lab("st2")
    arrive(k, CK)
    k("v_lshlrev_b32 v7, 4, v1")
    k.st(16, 4, 7, WS, 's36', 0, 'sc1'); k.st(20, 4, 7, WS, 's36', 1024, 'sc1')
    get_nonce(k, DBG)
    publish(k, WS, 's37', TAG); k.stamp(11)
    lwait(k, CK, 8)
    k.lab("gp_done")
def w1pref(k, W1):
    k(f"""s_mul_i32 s42, s44, 7
    s_lshr_b32 s42, s42, 1
    s_lshl_b32 s42, s42, 7
    s_lshl_b32 s43, s45, 2
    s_add_u32 s43, s43, s5
    s_mul_i32 s43, s43, {16*3584}
    s_add_u32 s42, s42, s43
    v_lshrrev_b32 v7, 2, v1
    v_mul_u32_u24 v7, 3584, v7
    v_lshl_add_u32 v7, v6, 7, v7""")
    k.ld(254, 1, 7, W1, 's42')
```

```python
from gen_common import *
NE = 5
LW, LF = ENV('LW', 5), ENV('LF', 4)
class Gemm:
    def __init__(g, k, steps, DW, DF, FR, TR, LW=LW, LF=LF):
        g.LW, g.LF, g.late = LW, LF, None
        g.k, g.st, g.DW, g.DF, g.FR, g.TR = k, steps, DW, DF, FR, TR
        g.q, g.nW, g.nF = [], 0, 0
    def wrap(g, p, so, inc):
        if 'wrap' in p and (p['i'] + 1) % p['wrap'][0] == 0 and p['i'] + 1 < p['wrap'][2]:
            per, sr, ln = p['wrap']
            g.k(f"s_cmp_eq_u32 {sr}, {(p['i']+1)//per}\ns_cselect_b32 s42, {ln*inc}, 0\ns_sub_u32 {so}, {so}, s42")
    def loadW(g):
        s = g.nW; g.nW += 1; p = g.st[s]; k = g.k
        v0, v1, srd, so, inc = p['dma']
        sl = s % g.DW
        k(f"s_add_u32 m0, s40, {2048*sl}" if sl < NE else f"s_add_u32 m0, s48, {2048*(sl-NE)}")
        if ENV('NOW'): return
        k.dma(v0, srd, so, 0, p.get('nt', '')); k.dma(v1, srd, so, 1024, p.get('nt', ''))
        k(f"s_add_u32 {so}, {so}, {inc}"); g.wrap(p, so, inc)
        g.q += [('W', s)]*2
    def loadF(g):
        s = g.nF; g.nF += 1; p = g.st[s]; k = g.k
        if 'preF' in p and not p['preF'](): g.q = []
        f0, f1, srd, so = p['frag']; b = g.FR + 8*(s % g.DF)
        if ENV('NOF'): return
        fl = '' if ENV('NOSC') else 'sc1'
        k.ld(b, 4, f0, srd, so, 0, fl); k.ld(b+4, 4, f1, srd, so, 0, fl)
        k(f"s_add_u32 {so}, {so}, 2048"); g.wrap(p, so, 2048)
        g.q += [('F', s)]*2
    def wait(g, *tags):
        idx = [i for i, t in enumerate(g.q) if t in tags]
        if idx:
            n = len(g.q) - 1 - max(idx); assert n < 64
            g.k(f"s_waitcnt vmcnt({n})"); g.q = g.q[max(idx)+1:]
    def trs(g, s):
        p = g.st[s]; b = g.TR + 8*(s & 1); sl = s % g.DW
        v, o = (p['trv'], 2048*sl) if sl < NE else (p['trv']+2, 2048*(sl-NE))
        for h in range(2): g.k.tr(b+4*h, v+h, o); g.k.tr(b+4*h+2, v+h, o + p['roff'])
    def run(g, st0):
        k, n, LW, LF = g.k, len(g.st), g.LW, g.LF
        while g.nF < LF or g.nW < LW:
            if g.nW < LW and (g.nW <= g.nF or g.nF >= LF): g.loadW()
            else: g.loadF()
        g.wait(('W', 0)); g.trs(0)
        for s in range(n):
            p = g.st[s]
            g.wait(('W', s+1), ('F', s))
            if s + 1 < n: g.trs(s+1); k("s_waitcnt lgkmcnt(4)")
            else: k("s_waitcnt lgkmcnt(0)")
            t = g.TR + 8*(s & 1); f = g.FR + 8*(s % g.DF)
            n0 = len(k.L)
            for a in range(2):
                for b in range(2):
                    A, B = (t+4*a, f+4*b) if p['w_is_a'] else (f+4*a, t+4*b)
                    k.mfma(p['acc']+16*(2*a+b), A, B, '0' if p['i'] == 0 else None)
            mix = ENV('MIX', 1) and not (g.nF < n and 'preF' in g.st[g.nF])
            lim = min(n, s+1+LF)
            if g.late and lim > g.late[0]: lim = g.late[0] if s < g.late[1] else min(n, s+1+g.DF)
            if lim == s+1+g.DF: mix = False
            while g.nF < lim: g.loadF()
            if g.nW < min(n, s+1+LW): g.loadW()
            if mix:
                mf, rest = k.L[n0:n0+4], k.L[n0+4:]; out = [mf.pop(0)]
                for l in rest:
                    out.append(l)
                    if 'buffer_load' in l and mf: out.append(mf.pop(0))
                k.L[n0:] = out + mf
            if 'post' in p: g.q += [('X', s)]*p['post']()
            if s % 16 == 15: k.stamp(st0 + s//16)
NLAB = [0]
def poll(k, voff, srd, soff, tag):
    NLAB[0] += 1; a, b = f"pl{NLAB[0]}", f"pd{NLAB[0]}"
    k("s_mov_b32 s43, 0x40000"); k.lab(a)
    k.ld(9, 1, voff, srd, soff, 0, 'sc1')
    k(f"s_waitcnt vmcnt(0)\nv_cmp_ne_u32 vcc, {tag}, v9\ns_sub_u32 s43, s43, 1"); k.br("s_cbranch_scc1", b)
    k.br("s_cbranch_vccz", b); k(f"s_mov_b64 exec, vcc\ns_sleep {ENV('SLP', 2)}"); k.br("s_branch", a); k.lab(b); k("s_mov_b64 exec, -1")
def publish(k, srd, soff, tag):
    k(f"s_waitcnt vmcnt(0)\ns_mov_b64 exec, 1\nv_mov_b32 v8, 0\nv_mov_b32 v9, {tag}")
    k.st(9, 1, 8, srd, soff, 0, 'sc1'); k("s_mov_b64 exec, -1")
def arrive(k, addr):
    k(f"s_waitcnt lgkmcnt(0)\ns_mov_b64 exec, 1\nv_mov_b32 v8, {addr}\nv_mov_b32 v9, 1\nds_add_u32 v8, v9\ns_mov_b64 exec, -1")
def lwait(k, addr, target):
    NLAB[0] += 1; a, b = f"ll{NLAB[0]}", f"ld{NLAB[0]}"
    k(f"v_mov_b32 v8, {addr}\ns_mov_b32 s43, 0x400000"); k.lab(a)
    k(f"ds_read_b32 v9, v8\ns_waitcnt lgkmcnt(0)\nv_cmp_gt_u32 vcc, {target}, v9\ns_sub_u32 s43, s43, 1"); k.br("s_cbranch_scc1", b)
    k.br("s_cbranch_vccz", b); k("s_sleep 1"); k.br("s_branch", a); k.lab(b)
def dma_offs(k, v0, v1, stride):
    k(f"""v_lshrrev_b32 v7, 3, v1
    v_and_b32 v8, 7, v1
    v_lshrrev_b32 v9, 2, v1
    v_and_b32 v9, 4, v9
    v_xor_b32 v8, v8, v9
    v_mul_u32_u24 v7, {stride}, v7
    v_lshl_add_u32 v{v0}, v8, 4, v7
    v_add_u32 v{v1}, {8*stride-1024}, v{v0}""")
def tr_offs(k, v, hfmul, sx):
    k(f"""v_mad_u32_u24 v7, v2, {hfmul}, v4
    v_lshl_add_u32 v7, v7, 7, v5
    v_lshrrev_b32 v8, 1, v4
    v_xor_b32 v8, {sx}, v8
    v_lshl_add_u32 v7, v8, 6, v7
    v_xor_b32 v8, 64, v7
    v_add_u32 v{v}, s40, v7
    v_add_u32 v{v+1}, s40, v8
    v_add_u32 v{v+2}, s48, v7
    v_add_u32 v{v+3}, s48, v8""")
def frag_offs(k, v0, v1, sx):
    k(f"v_lshlrev_b32 v7, 4, v1\nv_lshl_add_u32 v{v0}, {sx}, 10, v7\nv_xor_b32 v{v1}, 1024, v{v0}")
def red_write(k, acc, sw, base, wstride):
    k(f"s_mul_i32 s41, {sw}, {wstride}\ns_add_u32 s41, s41, {base}\nv_lshl_add_u32 v7, v1, 4, s41")
    for u in range(1, 4):
        for i in range(4): k(f"ds_write_b128 v7, {R(acc+16*u+4*i,4)} offset:{((u-1)*4+i)*1024}")
def red_read(k, acc, sw, base, wstride):
    for u in range(1, 4):
        k(f"s_xor_b32 s41, {sw}, {u}\ns_mul_i32 s41, s41, {wstride}\ns_add_u32 s41, s41, {base}\nv_lshl_add_u32 v7, v1, 4, s41")
        for i in range(4): k(f"ds_read_b128 {R(acc+16*u+4*i,4)}, v7 offset:{((u-1)*4+i)*1024}")
    for u in range(1, 4):
        k(f"s_waitcnt lgkmcnt({4*(3-u)})")
        for i in range(0, 16, 2): k(f"v_pk_add_f32 {R(acc+i,2)}, {R(acc+i,2)}, {R(acc+16*u+i,2)}")
def get_nonce(k, srd):
    NLAB[0] += 1; a, b = f"nl{NLAB[0]}", f"nd{NLAB[0]}"
    k("s_mov_b32 s43, 0x40000\nv_mov_b32 v8, 0"); k.lab(a)
    k("v_readfirstlane_b32 s60, v255\ns_cmp_lg_u32 s60, 0"); k.br("s_cbranch_scc1", b)
    k("s_sub_u32 s43, s43, 1"); k.br("s_cbranch_scc1", b)
    k.ld(255, 1, 8, srd, 0, 0, 'sc1'); k("s_waitcnt vmcnt(0)"); k.br("s_branch", a); k.lab(b)
```

```python
from gen_f1 import *
PFS, ASU = ENV('PFS', 12), ENV('ASU', 0)
P2 = lambda r: f'v[{r}:{r+1}]'
def w2pref(k, W2, WO):
    k(f"""s_lshl_b32 s42, s45, 2
    s_add_u32 s42, s42, s5
    v_lshrrev_b32 v7, 3, v1
    v_lshl_add_u32 v7, s42, 4, v7
    v_lshlrev_b32 v7, 12, v7
    v_and_b32 v8, 7, v1
    v_lshl_add_u32 v7, v8, 7, v7
    v_add_u32 v8, 0x8000, v7
    s_lshr_b32 s43, s44, 1
    s_lshl_b32 s43, s43, 10
    s_sub_u32 s42, 127, s42
    v_lshrrev_b32 v9, 2, v1
    v_lshl_add_u32 v9, s42, 4, v9
    v_mul_u32_u24 v9, 896, v9
    v_lshl_add_u32 v9, v6, 7, v9
    s_and_b32 s42, s44, 1
    s_mul_i32 s42, s42, 384""")
    k.ld(254, 1, 7, W2, 's43'); k.ld(253, 1, 8, W2, 's43'); k.ld(252, 1, 9, WO, 's42')
    return 3
def w2pref2(k, W2, WO, WS):
    k("s_cmp_lt_u32 s45, 25"); k.br("s_cbranch_scc1", "g2s")
    k(f"s_setprio {ENV('PPR', 1)}"); lwait(k, CA2, 4+4*ENV('PFL', 1))
    SK, NP = ENV('PSK', 10), ENV('PNP', 8)
    k(f"""s_sub_u32 s41, s45, 25
    s_lshl_b32 s42, s41, 2
    s_add_u32 s42, s42, s5
    v_lshrrev_b32 v7, 3, v1
    v_mad_u32_u24 v7, v6, 56, v7
    v_mad_u32_u24 v7, v6, 56, v7
    v_and_b32 v8, 7, v1
    v_lshlrev_b32 v8, 7, v8
    s_lshr_b32 s43, s44, 1
    s_lshl_b32 s43, s43, 10
    s_mul_i32 s36, s5, {448*4096}
    s_add_u32 s43, s43, s36
    v_lshrrev_b32 v9, 2, v1
    v_lshl_add_u32 v9, s42, 4, v9
    v_mul_u32_u24 v9, 896, v9
    v_lshl_add_u32 v9, v6, 7, v9
    s_and_b32 s42, s44, 1
    s_mul_i32 s42, s42, 384""")
    EV = ENV('PEV', 0)
    if EV: k(f"s_bitcmp0_b32 s44, 0\ns_cselect_b32 s36, 0, {7*EV}\ns_add_u32 s41, s41, s36")
    for i in range(NP-EV):
        if i == EV: k("s_bitcmp0_b32 s44, 0"); k.br("s_cbranch_scc1", "pwo")
        k(f"""s_cmp_lt_u32 s41, {SK}
        s_cselect_b32 s36, 0, {56-7*NP}
        s_add_u32 s36, s36, s41
        v_lshl_add_u32 v10, s36, 3, v7
        v_subrev_u32 v11, 448, v10
        v_min_u32 v10, v10, v11
        v_lshl_add_u32 v10, v10, 12, v8
        s_add_u32 s41, s41, 7""")
        k.ld(254-i, 1, 10, W2, 's43'); k(f"s_waitcnt vmcnt({ENV('PFN', 2)-1})")
    k.lab("pwo"); k.ld(246, 1, 9, WO, 's42')
def gemms(k):
    W1, WS, B1, W2, WO, B2, OUT = 8, 12, 16, 20, 24, 28, 32
    X, GW, WK = 24, 28, 32
    A1, A2, TR, FR = 40, 104, 168, 184
    k.srds(dict(x=X, gw=GW, dbg=DBG, wk=WK, ws=WS, w1=W1, b1=B1, w2=W2))
    k(f"""s_load_dwordx2 s[62:63], s[0:1], {ARG['wv']}
    s_sub_u32 s5, s5, 4
    s_lshr_b32 s6, s5, 1
    s_and_b32 s7, s5, 1
    s_mul_i32 s40, s5, {2048*NE}
    s_add_u32 s40, s40, {LE}
    s_mul_i32 s48, s5, {2048*(DW-NE)}
    s_and_b32 s44, s2, 7
    s_lshr_b32 s45, s2, 3
    s_and_b32 s47, s44, 1
    s_add_u32 s36, s45, s47
    s_cmp_lt_u32 s36, 25
    s_cselect_b32 s46, 4, 0
    s_lshr_b32 s50, s44, 1
    s_mul_i32 s50, s50, 49
    s_mul_i32 s47, s47, 25
    s_add_u32 s50, s50, s47
    s_add_u32 s51, s45, s50
    s_mul_i32 s50, s51, 9363
    s_lshr_b32 s50, s50, 16
    s_mul_i32 s47, s50, 7
    s_sub_u32 s51, s51, s47
    s_and_b32 s47, s50, 3
    s_lshl_b32 s49, s5, 2
    s_add_u32 s49, s49, s47
    s_sub_u32 s47, 4, s47
    s_mul_i32 s38, s49, {128*3584}
    s_lshl_b32 s52, s50, 7
    s_add_u32 s38, s38, s52
    s_lshl_b32 s39, s51, 4
    s_add_u32 s39, s39, s49
    s_lshl_b32 s39, s39, 14
    s_add_u32 s39, s39, {WS_HT}
    s_lshl_b32 s37, s6, 6
    s_add_u32 s52, s52, s37
    s_lshl_b32 s53, s51, 2
    s_add_u32 s53, s53, s5
    s_lshl_b32 s53, s53, {5+FB}
    s_add_u32 s53, s53, {WS_FH}
    v_mov_b32 v8, 0
    s_waitcnt lgkmcnt(0)""")
    k.ld(255, 1, 8, DBG, 0, 0, 'sc1')
    A = A1
    p = dict(dma=(10,11,W1,'s38',16*3584), frag=(12,13,WS,'s39'), trv=14, roff=512, acc=A, w_is_a=True, wrap=(8,'s47',32), nt='nt'*ENV('NT1'))
    st = [dict(p, i=s) for s in range(32)]
    if not ENV('PFN', 2): st[PFS]['post'] = lambda: w2pref(k, W2, WO)
    g = Gemm(k, st, DW, DF, FR, TR)
    def ringfill():
        k("s_cmp_eq_u32 s46, 0"); k.br("s_cbranch_scc1", "nofill")
        dma_offs(k, 10, 11, 3584)
        for i in range(NE): g.loadW()
        k("v_lshlrev_b32 v7, 3, v2")
        for i in range(4): k.ld(18+2*i, 2, 7, B1, 's52', 16*i)
        k.lab("nofill")
        return 2*NE + 4
    gprep(k, X, GW, WK, W1, WS, ringfill)
    k.srds(dict(wo=WO, b2=B2, out=OUT))
    k("s_waitcnt lgkmcnt(0)")
    lwait(k, CX, 4)
    k("s_cmp_eq_u32 s46, 0"); k.br("s_cbranch_scc1", "pref")
    ringfill()
    frag_offs(k, 12, 13, 's7'); tr_offs(k, 14, 8, 's6')
    k(f"v_lshlrev_b32 v32, {FB}, v3")
    poll(k, 32, WS, 's53', TAG); k.stamp(12); g.q = []
    for i in range(LF): g.loadF()
    lwait(k, CQ1, 4)
    k(f"s_setprio {ENV('PRIO', 1)}")
    g.run(1)
    k("s_setprio 2")
    red_write(k, A, 's5', 0, 14336)
    arrive(k, CG1)
    k(f"""s_mul_i32 s39, s51, 28
    s_add_u32 s39, s39, s50
    s_lshl_b32 s38, s39, 1
    s_add_u32 s38, s38, s6
    s_lshl_b32 s38, s38, 12
    s_add_u32 s38, s38, {WS_U}
    s_lshl_b32 s39, s39, 2
    s_add_u32 s39, s39, s5
    s_lshl_b32 s39, s39, {FB}
    s_add_u32 s39, s39, {WS_FU}""")
    n0 = len(k.L)
    k(f"""s_and_b32 s36, s44, 1
    s_lshl_b32 s36, s36, 2
    s_lshr_b32 s4, s45, 3
    s_add_u32 s4, s4, s36
    s_cmp_ge_u32 s4, 7"""); k.br("s_cbranch_scc1", "end")
    k(f"""s_and_b32 s47, s45, 3
    s_lshr_b32 s3, s44, 1
    s_lshl_b32 s3, s3, 3
    s_and_b32 s36, s45, 7
    s_add_u32 s3, s3, s36
    s_lshl_b32 s49, s5, 2
    s_add_u32 s49, s49, s47
    s_sub_u32 s47, 4, s47
    s_mul_i32 s50, s49, {112*4096}
    s_lshl_b32 s36, s3, 7
    s_add_u32 s50, s50, s36
    s_lshl_b32 s51, s4, 4
    s_add_u32 s51, s51, s49
    s_mul_i32 s51, s51, {7*2048}
    s_add_u32 s51, s51, {WS_U}
    s_mul_i32 s52, s5, {112*896}
    s_lshl_b32 s36, s4, 7
    s_add_u32 s52, s52, s36
    s_lshl_b32 s53, s3, 2
    s_add_u32 s53, s53, s5
    s_lshl_b32 s55, s53, {3+FB}
    s_add_u32 s55, s55, {WS_FO}
    s_mul_i32 s53, s53, {7*2048}
    s_add_u32 s53, s53, {WS_O}
    s_lshl_b32 s54, s4, 2
    s_add_u32 s54, s54, s5
    s_mul_i32 s54, s54, {28<<FB}
    s_mov_b32 s49, {WS_FU}""")
    dma_offs(k, 10, 11, 4096)
    p1 = dict(dma=(10,11,W2,'s50',65536), frag=(26,27,WS,'s51'), trv=14, roff=1024, acc=A1, w_is_a=False, wrap=(7,'s47',28), nt='nt'*ENV('NT2'))
    p2 = dict(dma=(18,19,WO,'s52',16*896), frag=(12,13,WS,'s53'), trv=20, roff=1024, acc=A1, w_is_a=True)
    st = [dict(p1, i=s) for s in range(28)] + [dict(p2, i=s+1) for s in range(7)]
    PO = ENV('PO', 26)
    def pre0():
        k.stamp(4)
        if ASU: g.wait(('X', -1)); k(f"v_cmp_ne_u32 vcc, {TAG}, v36"); k.br("s_cbranch_vccz", "urdy")
        poll(k, 32, WS, 's49', TAG); k.lab("urdy"); k.stamp(5)
        k.ld(29, 1, 34, WS, 's36', 0, 'sc1'); k.ld(30, 1, 35, WS, 's36', 0, 'sc1')
        k(f"s_setprio {ENV('PRIO2', 0)}")
        if ASU: g.q += [('Y', 0)]*2
        return ASU
    st[0]['preF'] = pre0
    def pre28():
        k.stamp(8)
        if ENV('ASY', 3):
            g.wait(('X', PO-ENV('ASY', 3)))
            k(f"v_cmp_ne_u32 vcc, {TAG}, v36"); k.br("s_cbranch_vccz", "ordy")
        poll(k, 33, WS, 's55', TAG); k.lab("ordy"); k.stamp(9)
        return ENV('ASY', 3)
    st[28]['preF'] = pre28
    if ENV('ASY', 3): st[PO-ENV('ASY', 3)]['post'] = lambda: (k.ld(36, 1, 33, WS, 's55', 0, 'sc1'), 1)[1]
    g = Gemm(k, st, DW, DF, FR, TR, ENV('LW2', 6), ENV('LF2', 4)); g.late = (28, PO)
    for i in range(NE): g.loadW()
    setup = k.L[n0:]
    lwait(k, CG1, 4)
    red_read(k, A, 's5', 0, 14336)
    arrive(k, CG2)
    c0 = -2*0.7978845608028654*1.4426950408889634; T = A + 16
    for i in range(8): k(f"v_lshlrev_b32 v{T+2*i}, 16, v{18+i}\nv_and_b32 v{T+1+2*i}, 0xffff0000, v{18+i}")
    k(f"v_mov_b32 v8, {c0!r}\nv_mov_b32 v9, {c0*0.044715!r}")
    ev = range(0, 16, 2)
    for i in ev: k(f"v_pk_add_f32 {P2(A+i)}, {P2(A+i)}, {P2(T+i)}")
    for i in ev: k(f"v_pk_mul_f32 {P2(T+i)}, {P2(A+i)}, {P2(A+i)}")
    for i in ev: k(f"v_pk_fma_f32 {P2(T+i)}, {P2(T+i)}, v[8:9], v[8:9] op_sel:[0,1,0] op_sel_hi:[1,1,0]")
    for i in ev: k(f"v_pk_mul_f32 {P2(T+i)}, {P2(T+i)}, {P2(A+i)}")
    for i in range(16): k(f"v_exp_f32 v{T+i}, v{T+i}")
    for i in ev: k(f"v_pk_add_f32 {P2(T+i)}, {P2(T+i)}, 1.0 op_sel_hi:[1,0]")
    for i in range(16): k(f"v_rcp_f32 v{T+i}, v{T+i}")
    for i in ev: k(f"v_pk_mul_f32 {P2(A+i)}, {P2(A+i)}, {P2(T+i)}")
    for i in range(8): k.cvt(16+i, A+2*i, A+2*i+1)
    k.st(16, 4, 12, WS, 's38', 0, 'sc1'); k.st(20, 4, 12, WS, 's38', 2048, 'sc1')
    publish(k, WS, 's39', TAG); k.stamp(3)
    k.br("s_branch", "g2")
    k.lab("pref")
    if ENV('PFN', 2): w2pref2(k, W2, WO, WS)
    else: w2pref(k, W2, WO)
    k.lab("g2s"); k("s_setprio 2"); k.L += setup
    k.lab("g2")
    tr_offs(k, 14, 4, 's7'); dma_offs(k, 18, 19, 896); tr_offs(k, 20, 4, 's6')
    frag_offs(k, 12, 13, 's7'); frag_offs(k, 26, 27, 's6')
    k(f"""s_lshl_b32 s36, s3, 1
    s_add_u32 s36, s36, s7
    v_lshl_add_u32 v28, s36, 5, v3
    v_lshlrev_b32 v34, 2, v28
    v_xor_b32 v35, 128, v34
    v_lshlrev_b32 v9, 1, v28
    s_lshl_b32 s36, s3, {2+FB}
    v_lshl_add_u32 v33, v6, {FB}, s36
    v_add_u32 v33, {WS_FH-WS_FU}, v33
    v_cmp_gt_u32 vcc, 28, v1
    v_lshl_add_u32 v32, v1, {FB}, s54
    s_mov_b32 s36, {WS_G}
    v_cndmask_b32 v32, v33, v32, vcc
    v_and_b32 v33, 7, v1
    v_lshlrev_b32 v33, {FB}, v33
    buffer_load_ushort v31, v9, {R(B2,4,'s')}, 0 offen""")
    lwait(k, CG2, 's46'); lwait(k, CQ1, 4)
    if ASU: k.ld(36, 1, 32, WS, 's49', 0, 'sc1'); g.q += [('X', -1)]
    for i in range(ENV('NL', DW-NE)): g.loadW()
    def scale():
        k("s_setprio 2\nv_sub_f32 v36, 1.0, v29\nv_sub_f32 v37, 1.0, v30\nv_lshlrev_b32 v30, 16, v31")
        for i in ev: k(f"v_pk_add_f32 {P2(A1+i)}, {P2(A1+i)}, v[30:31] op_sel_hi:[1,0]")
        for u in range(4):
            for i in ev: k(f"v_pk_mul_f32 {P2(A1+16*u+i)}, {P2(A1+16*u+i)}, v[36:37] op_sel:[0,{u&1}] op_sel_hi:[1,{u&1}]")
        return 0
    g.st[27]['post'] = scale
    g.run(6)
    k("s_setprio 2")
    A2 = A1
    k.stamp(10)
    red_write(k, A2, 's5', 0, 14336)
    arrive(k, CG3); lwait(k, CG3, 4)
    red_read(k, A2, 's5', 0, 14336)
    k(f"""v_mul_u32_u24 v7, 896, v28
    v_lshl_add_u32 v7, v2, 4, v7
    s_lshl_b32 s36, s4, 1
    s_add_u32 s36, s36, s6
    s_lshl_b32 s36, s36, 6""")
    for h in range(2):
        b = A2 + 8*h; t = 104 + 4*h
        k.cvt(t, b, b+1); k.cvt(t+1, b+2, b+3); k.cvt(t+2, b+4, b+5); k.cvt(t+3, b+6, b+7)
        k(f"v_permlane32_swap_b32 v{t}, v{t+2}\nv_permlane32_swap_b32 v{t+1}, v{t+3}")
        k.st(t, 4, 7, OUT, 's36', 32*h, ('', 'sc1', 'nt', 'sc0 sc1')[ENV('OSC')])
def gen_f():
    k = K("gated_mix__grouped_kv_mqa__mixer_token_mlp__prompt_kernel", 256)
    k("s_cmp_ge_u32 s2, 256"); k.br("s_cbranch_scc1", "end")
    if ENV('PERM'): k("s_and_b32 s3, s2, 7\ns_lshl_b32 s3, s3, 5\ns_lshr_b32 s2, s2, 3\ns_or_b32 s2, s2, s3")
    k("s_load_dword s8, s[0:1], 0\ns_load_dword s9, s[0:1], 104")
    k("v_lshrrev_b32 v1, 6, v0\ns_and_b32 s3, s2, 31\nv_readfirstlane_b32 s5, v1\ns_lshr_b32 s4, s2, 5")
    lane_fields(k, 0)
    k(f"v_and_b32 v7, 15, v1\nv_lshlrev_b32 v7, 2, v7\nv_add_u32 v7, {LC}, v7\nv_mov_b32 v8, 0\nds_write_b32 v7, v8\ns_waitcnt lgkmcnt(0)\ns_barrier")
    k("s_cmp_ge_u32 s5, 4"); k.br("s_cbranch_scc1", "g")
    X, WS, WQ = 8, 12, 16
    k.srds(dict(x=X, dbg=DBG, wq=WQ, ws=WS, w1=20))
    k("s_memrealtime s[60:61]\ns_or_b32 s6, s2, s5\ns_waitcnt lgkmcnt(0)\ns_cmp_eq_u32 s6, 0"); k.br("s_cbranch_scc0", "nononce")
    k("s_or_b32 s60, s60, 1"); publish(k, DBG, 0, 's60')
    k.lab("nononce")
    k.ld(255, 1, 8, DBG, 0, 0, 'sc1')
    k("s_setprio 2"); aprep(k, X, WQ, WS)
    attn(k, WS)
    k.lab("g")
    k("s_setprio 3")
    gemms(k)
    k.lab("end"); k("s_waitcnt vmcnt(0)\ns_endpgm")
    return k
if __name__ == "__main__":
    import sys
    from hazard import pad
    k = gen_f(); k.finish(0); k.L = pad(k.L)
    hdr = f"; @launch kernel={k.name} " if ENV('STAMP') == 1 else "; @launch "
    t = hdr + f"grid=(256,1,1) block=(512,1,1) lds={LDS}\n" + '.amdgcn_target "amdgcn-amd-amdhsa--gfx950"\n' + k.text().replace(k.name + "_", "L_")
    open(sys.argv[1] if len(sys.argv) > 1 else "gated_mix__grouped_kv_mqa__mixer_token_mlp__prompt.s", "w").write(t)
```
